```python
import torch

def _softmax(x, axis=-1):
    return torch.softmax(x, dim=axis)
def _gelu(x):
    return torch.nn.functional.gelu(x, approximate="tanh")
def _silu(x):
    return torch.nn.functional.silu(x)
def _sigmoid(x):
    return torch.sigmoid(x)
def _layernorm(x, axis=-1, eps=1e-5):
    m = x.mean(dim=axis, keepdim=True)
    v = x.var(dim=axis, keepdim=True, unbiased=False)
    return (x - m) / torch.sqrt(v + eps)
def _scatter_add(tgt, idx, src, axis=0):
    return tgt.clone().index_add_(axis, idx, src)
def _segment_sum(src, seg, n):
    out = torch.zeros((n,) + src.shape[1:], dtype=src.dtype)
    return out.index_add_(0, seg, src)
def _pad(x, pw):
    flat = tuple(v for pair in reversed(pw) for v in pair)
    return torch.nn.functional.pad(x, flat)

kernel_name = 'interleave_layers__linear_kernel_hedgehog__geglu_ffn__prompt'

def setup_inputs():

    _w = (lambda a: (lambda t: t.to(torch.bfloat16) if t.is_floating_point() else t)(torch.as_tensor(a)))
    def _A_setup():
        B, S, D, H = 1, 2048, 640, 32
        Dh = D // H
        return {
            "x": _w((lambda *s: torch.randn(*s, dtype=torch.bfloat16) * 0.05)(B, S, D)),
            "wqkv": _w((lambda *s: torch.randn(*s, dtype=torch.bfloat16) * 0.2)(D, 3 * D)),
            "w_phi": _w((lambda *s: torch.randn(*s, dtype=torch.bfloat16) * 0.2)(H, Dh, Dh) * (Dh ** -0.5)),
            "wo": _w((lambda *s: torch.randn(*s, dtype=torch.bfloat16) * 0.05)(D, D)),
        }
    _A_in = _A_setup()

    def _B_setup():
        B, S, D, F = 1, 2048, 640, 1536
        return {
            "x": _w((lambda *s: torch.randn(*s, dtype=torch.bfloat16) * 0.05)(B, S, D)),
            "w_gate": _w((lambda *s: torch.randn(*s, dtype=torch.bfloat16) * 0.05)(D, F)),
            "w_up": _w((lambda *s: torch.randn(*s, dtype=torch.bfloat16) * 0.05)(D, F)),
            "w_down": _w((lambda *s: torch.randn(*s, dtype=torch.bfloat16) * 0.05)(F, D)),
        }
    _B_in = _B_setup()

    return {
        "A_x": _A_in["x"],
        "A_wqkv": _A_in["wqkv"],
        "A_w_phi": _A_in["w_phi"],
        "A_wo": _A_in["wo"],
        "B_x": _B_in["x"],
        "B_w_gate": _B_in["w_gate"],
        "B_w_up": _B_in["w_up"],
        "B_w_down": _B_in["w_down"],
    }

def reference(A_x, A_wqkv, A_w_phi, A_wo, B_x, B_w_gate, B_w_up, B_w_down):
    def _A_ref(x, wqkv, w_phi, wo):
        B, S, D = x.shape
        H = 32; Dh = D // H
        qkv = (lambda x, *d: x.permute(*d))((x @ wqkv).reshape(B, S, 3, H, Dh), 2, 0, 3, 1, 4)
        q, k, v = qkv[0], qkv[1], qkv[2]
        pq = torch.einsum("bhsd,hdf->bhsf", q, w_phi)
        pk = torch.einsum("bhsd,hdf->bhsf", k, w_phi)
        phi_q = torch.concatenate([_softmax(pq, axis=-1), _softmax(-pq, axis=-1)], axis=-1)
        phi_k = torch.concatenate([_softmax(pk, axis=-1), _softmax(-pk, axis=-1)], axis=-1)
        kv = torch.einsum("bhsf,bhsd->bhfd", phi_k, v)
        z  = torch.einsum("bhsf->bhf", phi_k)
        num = torch.einsum("bhqf,bhfd->bhqd", phi_q, kv)
        den = torch.einsum("bhqf,bhf->bhq", phi_q, z)[..., None] + 1e-6
        o = num / den
        return (lambda x, *d: x.permute(*d))(o, 0, 2, 1, 3).reshape(B, S, D) @ wo

    def _B_ref(x, w_gate, w_up, w_down):
        return (_gelu(x @ w_gate) * (x @ w_up)) @ w_down

    x = A_x
    x = x + _A_ref(_layernorm(x, axis=-1), A_wqkv, A_w_phi, A_wo)
    x = x + _B_ref(_layernorm(x, axis=-1), B_w_gate, B_w_up, B_w_down)
    x = x + _A_ref(_layernorm(x, axis=-1), A_wqkv, A_w_phi, A_wo)
    x = x + _B_ref(_layernorm(x, axis=-1), B_w_gate, B_w_up, B_w_down)
    return x
```

```python
import re

TRANS = ("v_exp_f32", "v_log_f32", "v_rcp_f32", "v_rsq_f32", "v_sqrt_f32", "v_sin_f32", "v_cos_f32",
         "v_rcp_iflag_f32")
REG_RE = re.compile(r"^-?\|?(abs\()?([vas])(\d+)\)?\|?$")
RANGE_RE = re.compile(r"^-?([vas])\[(\d+):(\d+)\]$")


def regs_of(op):
    op = op.strip()
    m = REG_RE.match(op)
    if m:
        return [m.group(2) + m.group(3)]
    m = RANGE_RE.match(op)
    if m:
        return [m.group(1) + str(i) for i in range(int(m.group(2)), int(m.group(3)) + 1)]
    if op in ("vcc", "exec", "m0", "scc"):
        return [op]
    if op in ("vcc_lo", "vcc_hi"):
        return ["vcc"]
    if op in ("exec_lo", "exec_hi"):
        return ["exec"]
    return []


def split_ops(s):
    out, depth, cur = [], 0, ""
    for ch in s:
        if ch in "[(":
            depth += 1
        if ch in "])":
            depth -= 1
        if ch == "," and depth == 0:
            out.append(cur.strip())
            cur = ""
        else:
            cur += ch
    if cur.strip():
        out.append(cur.strip())
    mods = ""
    if out:
        last = out[-1]
        depth = 0
        for i, ch in enumerate(last):
            if ch in "[(":
                depth += 1
            if ch in "])":
                depth -= 1
            if ch == " " and depth == 0:
                mods = last[i + 1:]
                out[-1] = last[:i]
                break
    return out, mods


class Ins:
    __slots__ = ("text", "mn", "ops", "mods", "cls", "reads", "writes", "trans")

    def __init__(self, text):
        self.text = text
        t = text.strip()
        parts = t.split(None, 1)
        mn = parts[0]
        self.mn = mn
        self.ops, self.mods = split_ops(parts[1]) if len(parts) > 1 else ([], "")
        base = re.sub(r"_(e32|e64|dpp|sdwa)$", "", mn)
        self.trans = base in TRANS
        ops = self.ops
        R, W = [], []
        if mn.startswith("v_mfma"):
            c = "mfma"
            W = regs_of(ops[0])
            for o in ops[1:]:
                R += regs_of(o)
        elif mn.startswith("v_"):
            c = "valu"
            if base.startswith("v_cmpx"):
                W = regs_of(ops[0]) + ["exec"]
                for o in ops[1:]:
                    R += regs_of(o)
            elif base.startswith("v_cmp"):
                W = regs_of(ops[0])
                for o in ops[1:]:
                    R += regs_of(o)
            elif base in ("v_add_co_u32", "v_sub_co_u32", "v_addc_co_u32", "v_subb_co_u32", "v_subrev_co_u32"):
                W = regs_of(ops[0]) + regs_of(ops[1])
                for o in ops[2:]:
                    R += regs_of(o)
            elif base.startswith("v_permlane") and "swap" in base:
                W = regs_of(ops[0]) + regs_of(ops[1])
                R = list(W)
            elif base in ("v_fmac_f32", "v_pk_fmac_f16", "v_dot2c_f32_bf16", "v_writelane_b32"):
                W = regs_of(ops[0])
                R = list(W)
                for o in ops[1:]:
                    R += regs_of(o)
            elif base == "v_nop":
                pass
            else:
                W = regs_of(ops[0])
                for o in ops[1:]:
                    R += regs_of(o)
            if "dpp" in mn or "row_" in self.mods or "quad_perm" in self.mods:
                R += W
        elif mn.startswith("global_") or mn.startswith("buffer_"):
            c = "vmem"
            if mn.startswith("global_load_lds") or (mn.startswith("buffer_load") and " lds" in " " + self.mods):
                for o in ops:
                    R += regs_of(o)
                R.append("m0")
            elif "_load_" in mn:
                W = regs_of(ops[0])
                for o in ops[1:]:
                    R += regs_of(o)
            elif "atomic" in mn and "sc0" in self.mods:
                W = regs_of(ops[0])
                for o in ops[1:]:
                    R += regs_of(o)
            else:
                for o in ops:
                    R += regs_of(o)
        elif mn.startswith("ds_"):
            c = "ds"
            if mn.startswith("ds_read") or mn.startswith("ds_bpermute") or mn.startswith("ds_swizzle") \
                    or mn.startswith("ds_permute"):
                W = regs_of(ops[0])
                for o in ops[1:]:
                    R += regs_of(o)
            else:
                for o in ops:
                    R += regs_of(o)
        elif mn.startswith("s_load") or mn in ("s_memtime", "s_memrealtime"):
            c = "smem"
            W = regs_of(ops[0])
            for o in ops[1:]:
                R += regs_of(o)
        elif mn in ("s_waitcnt", "s_nop", "s_barrier", "s_sleep", "s_setprio", "s_endpgm", "s_branch") \
                or mn.startswith("s_cbranch"):
            c = "ctl"
        elif mn.startswith("s_"):
            c = "salu"
            if mn.startswith("s_cmp") or mn.startswith("s_bitcmp"):
                for o in ops:
                    R += regs_of(o)
            elif "saveexec" in mn:
                W = regs_of(ops[0]) + ["exec"]
                R = ["exec"]
                for o in ops[1:]:
                    R += regs_of(o)
            elif mn.startswith("s_getreg"):
                W = regs_of(ops[0])
            else:
                W = regs_of(ops[0])
                for o in ops[1:]:
                    R += regs_of(o)
        else:
            raise ValueError("unknown instruction: " + text)
        self.cls = c
        self.reads = R
        self.writes = W


class Asm:
    def __init__(self):
        self.out = []
        self.pos = 0
        self.wr = {}
        self.mfma_c = {}
        self.mfma_d = {}
        self.st_data = {}
        self.vm = []
        self.lg = []
        self.nid = 0
        self.nlabel = 0
        self.ninstr = 0
        self.stats = {}
        self.dma_ctx = None

    def raw(self, text):
        self.out.append(text)

    def comment(self, text):
        self.out.append("; " + text)

    def _put(self, text, states=1):
        self.out.append("    " + text)
        self.pos += states
        self.ninstr += 1

    def nop(self, n):
        while n > 0:
            k = min(n, 16)
            self._put(f"s_nop {k-1}", k)
            n -= k

    def newlabel(self, stem):
        self.nlabel += 1
        return f"L_{stem}_{self.nlabel}"

    def _wait(self, vm=None, lg=None):
        parts = []
        if vm is not None:
            vm = min(vm, 63)
            if len(self.vm) > vm:
                self.vm = self.vm[len(self.vm) - vm:] if vm else []
                parts.append(f"vmcnt({vm})")
        if lg is not None:
            lg = min(lg, 15)
            if any(e.get("smem") for e in self.lg):
                lg = 0
            if len(self.lg) > lg:
                self.lg = self.lg[len(self.lg) - lg:] if lg else []
                parts.append(f"lgkmcnt({lg})")
        if parts:
            self._put("s_waitcnt " + " ".join(parts))

    def wait_vm(self, n=0):
        self._wait(vm=n)

    def wait_lg(self, n=0):
        self._wait(lg=n)

    def drain(self):
        self._wait(vm=0, lg=0)

    def force_wait(self, text):
        m = re.search(r"vmcnt\((\d+)\)", text)
        if m:
            n = int(m.group(1))
            self.vm = self.vm[len(self.vm) - n:] if n and len(self.vm) > n else ([] if n == 0 else self.vm)
        m = re.search(r"lgkmcnt\((\d+)\)", text)
        if m:
            n = int(m.group(1))
            self.lg = self.lg[len(self.lg) - n:] if n and len(self.lg) > n else ([] if n == 0 else self.lg)
        self._put("s_waitcnt " + text)

    def vm_token(self):
        return self.nid_vm_last

    def wait_token(self, tok):
        for i, e in enumerate(self.vm):
            if e["id"] == tok:
                self._wait(vm=len(self.vm) - i - 1)
                return

    def lg_token(self):
        return self.nid_lg_last

    def wait_lg_token(self, tok):
        for i, e in enumerate(self.lg):
            if e["id"] == tok:
                self._wait(lg=len(self.lg) - i - 1)
                return

    def _auto_wait(self, ins):
        touched = set(ins.reads) | set(ins.writes)
        nvm = None
        for i, e in enumerate(self.vm):
            if e["dst"] & touched:
                nvm = len(self.vm) - i - 1
        nlg = None
        for i, e in enumerate(self.lg):
            if e["dst"] & touched:
                nlg = len(self.lg) - i - 1
        if nvm is not None or nlg is not None:
            self._wait(vm=nvm, lg=nlg)

    def _need(self, ins):
        need = 0

        def req(prod_pos, states):
            nonlocal need
            have = self.pos - prod_pos - 1
            if states - have > need:
                need = states - have

        c = ins.cls
        for r in ins.reads:
            w = self.wr.get(r)
            if w is None:
                continue
            p, kind = w
            if kind in ("valu", "trans"):
                if r[0] in "va" and r != "vcc":
                    if c == "mfma":
                        req(p, 2)
                    elif c == "valu":
                        if kind == "trans":
                            req(p, 1)
                        if ins.mn.startswith("v_readfirstlane") or ins.mn.startswith("v_readlane"):
                            req(p, 1)
                        if ins.mn.startswith("v_permlane") or "dpp" in ins.mn or "row_" in ins.mods \
                                or "quad_perm" in ins.mods:
                            req(p, 2)
                elif r == "exec":
                    if c == "mfma":
                        req(p, 4)
                    elif c == "valu":
                        req(p, 5)
                else:
                    if c == "valu":
                        req(p, 4 if ins.mn.startswith("v_readlane") or ins.mn.startswith("v_writelane") else 2)
                    elif c == "vmem":
                        req(p, 5)
                    elif c in ("salu", "smem"):
                        req(p, 1)
            elif kind == "salu":
                if r == "m0" and c == "vmem":
                    req(p, 1)
            if r in self.mfma_d:
                p, tup = self.mfma_d[r]
                if c == "mfma":
                    cre = regs_of(ins.ops[3])
                    if r in cre and tuple(cre) == tup and r not in regs_of(ins.ops[1]) + regs_of(ins.ops[2]):
                        pass
                    elif r in cre and r not in regs_of(ins.ops[1]) + regs_of(ins.ops[2]):
                        req(p, 6)
                    else:
                        req(p, 8)
                else:
                    req(p, 8)
        for r in ins.writes:
            if r in self.mfma_d:
                p, tup = self.mfma_d[r]
                if c == "mfma":
                    if not (tuple(ins.writes) == tup and tuple(regs_of(ins.ops[3])) == tup):
                        req(p, 8)
                else:
                    req(p, 8)
            if r in self.mfma_c and c == "valu":
                req(self.mfma_c[r], 3)
            if r in self.st_data:
                req(self.st_data[r], 2 if c == "valu" else 1)
        return need

    def _record(self, ins):
        c = ins.cls
        p = self.pos - 1
        for r in ins.writes:
            self.mfma_d.pop(r, None)
            if c == "valu":
                self.wr[r] = (p, "trans" if ins.trans else "valu")
            else:
                self.wr[r] = (p, c)
        if c == "mfma":
            tup = tuple(ins.writes)
            for r in tup:
                self.mfma_d[r] = (p, tup)
            for r in regs_of(ins.ops[3]):
                self.mfma_c[r] = p
        if c == "vmem":
            self.nid += 1
            self.nid_vm_last = self.nid
            self.vm.append(dict(dst=set(ins.writes), id=self.nid))
            if "store" in ins.mn and ("x4" in ins.mn or "x3" in ins.mn):
                data = ins.ops[1] if ins.mn.startswith("global") else ins.ops[0]
                for r in regs_of(data):
                    self.st_data[r] = p
        elif c == "ds":
            self.nid += 1
            self.nid_lg_last = self.nid
            self.lg.append(dict(dst=set(ins.writes), id=self.nid))
            if ins.mn in ("ds_write_b128", "ds_write_b96"):
                for r in regs_of(ins.ops[1]):
                    self.st_data[r] = p
        elif c == "smem":
            self.nid += 1
            self.lg.append(dict(dst=set(ins.writes), id=self.nid, smem=True))

    def I(self, text):
        ins = Ins(text)
        if ins.mn == "s_nop":
            self._put(text, int(ins.ops[0]) + 1)
            return
        if ins.mn == "s_waitcnt":
            self.force_wait(text.split(None, 1)[1])
            return
        self._auto_wait(ins)
        n = self._need(ins)
        if n > 0:
            self.nop(n)
        self._put(text)
        self._record(ins)
        self.stats[ins.cls] = self.stats.get(ins.cls, 0) + 1

    def __call__(self, text):
        for line in text.strip().split("\n"):
            line = line.split(";")[0].strip()
            if line:
                self.I(line)

    def settle(self):
        need = 0
        for r, (p, kind) in self.wr.items():
            if kind in ("valu", "trans"):
                need = max(need, 5 - (self.pos - p - 1))
            elif kind == "salu" and r == "m0":
                need = max(need, 1 - (self.pos - p - 1))
        for r, (p, tup) in self.mfma_d.items():
            need = max(need, 8 - (self.pos - p - 1))
        for r, p in self.st_data.items():
            need = max(need, 2 - (self.pos - p - 1))
        if need > 0:
            self.nop(need)

    def label(self, name, drained=True):
        if drained:
            assert not self.vm and not self.lg, f"outstanding memory ops at label {name}"
        self.dma_ctx = None
        self.settle()
        self.out.append(name + ":")

    def branch(self, text, drained=True):
        if drained:
            assert not self.vm and not self.lg, f"outstanding memory ops at branch {text}"
        self.settle()
        self._put(text)

    def barrier(self):
        self._wait(lg=0)
        self._put("s_barrier")

    def text(self):
        return "\n".join(self.out) + "\n"
```

```python
from layout import WS, KB, NKS
from gen_prep import (S_OUT, S_DBG, S_WS, S_WAVE, S_RB, S_MEM, S_SLOW, S_LAYER, S_EPOCH,
                      V_TID, V_LANE, V_L16, V_J, V_G, sp, vr, ar, add64, SPIN_MAX, reduce_groups)

S_T0, S_T1, S_T2, S_T3, S_T4, S_T5 = 30, 31, 32, 33, 34, 35
S_WB = 36
S_XB = 38
S_P0 = 40
S_P1 = 42
S_P2 = 44
S_P3 = 46
S_L2E = 48
S_M0B = 50
S_EX = 52
S_EX2 = 54
S_TT0 = 56
S_CT, S_TH = 57, 58
S_STAMP = 60
S_C0, S_C1 = 62, 64
S_SPIN = 66

V_O8K = 5
V_L16H = 10

LDS_PHI = 128 * KB
LDS_KVF = 148 * KB
LDS_VIMG = 104 * KB
LOG2E = 1.4426950408889634


def f2u(x):
    import struct
    return "0x%08x" % struct.unpack("<I", struct.pack("<f", x))[0]


def mfma(a, d, A, B, C):
    a(f"v_mfma_f32_16x16x32_bf16 {d}, {A}, {B}, {C}")


def lds_frag(n):
    off = n * 1024
    return (V_L16, off) if off < 65536 else (V_L16H, off - 65536)


def stamp(a, st, idx):
    if not st:
        return
    skip = a.newlabel("stamp")
    vm, lg = list(a.vm), list(a.lg)
    a(f"s_cmp_lg_u32 s{S_WAVE}, 0")
    a.branch(f"s_cbranch_scc1 {skip}", drained=False)
    a("s_memrealtime s[68:69]")
    a._put("s_waitcnt lgkmcnt(0)")
    a.lg = []
    a(f"s_lshl_b32 s70, s2, 8")
    a(f"s_mul_i32 s71, s{S_LAYER}, 128")
    a(f"s_add_u32 s70, s70, s71")
    a(f"s_add_u32 s70, s70, {WS.DBG + 4*idx}")
    a("v_mov_b32 v254, s68")
    a("v_mov_b32 v255, s70")
    a("s_mov_b64 s[72:73], exec")
    a("s_mov_b64 exec, 1")
    a(f"global_store_dword v255, v254, {sp(S_WS)}")
    a("s_mov_b64 exec, s[72:73]")
    a._put("s_waitcnt vmcnt(0)")
    a.label(skip, drained=False)
    a.vm, a.lg = vm, lg


def dma_frags(a, base, first, count, lds_first):
    ops = []

    def setup(n0):
        def f():
            a(f"s_mul_i32 s{S_T0}, s{S_WAVE}, {count*1024}")
            a(f"s_add_u32 s{S_T1}, s{S_T0}, {(first + n0)*1024 + 4096}")
            add64(a, S_P3, base, f"s{S_T1}")
            a(f"s_add_u32 m0, s{S_T0}, {(lds_first + n0)*1024 + 4096}")
        return f
    key = object()
    for n in range(count):
        def op(n=n):
            if a.dma_ctx != (key, n // 8):
                setup(n - n % 8)()
                a.dma_ctx = (key, n // 8)
            a(f"global_load_lds_dwordx4 v{V_L16}, {sp(S_P3)} offset:{(n % 8)*1024 - 4096} sc1")
        ops.append(op)
    return ops


def act_load(a, dst, base, n, sc="sc1"):
    return lambda: a(f"global_load_dwordx4 {dst}, v{V_O8K + n//8}, {sp(base)} offset:{(n % 8)*1024 - 4096} {sc}")


def gemm_pass(a, steps, nw, wreg, bregs, acc, pre=None, side=None, first_zero=True):
    pre = pre or {}
    side = side or {}

    def reads(i):
        ks, fr = steps[i]
        out = []
        for t in range(nw):
            av, imm = lds_frag(fr + t)
            out.append(f"ds_read_b128 {wreg(i % 2, t)}, v{av} offset:{imm}")
        return out
    if 0 in pre:
        pre[0]()
    for r in reads(0):
        a(r)
    for i, (ks, fr) in enumerate(steps):
        nxt = []
        if i + 1 < len(steps):
            if i + 1 in pre:
                pre[i + 1]()
            nxt = reads(i + 1)
        B = bregs(ks)
        work = [(t, ti) for t in range(nw) for ti in range(len(B))]
        extra = list(side.get(i, []))
        fill = [(lambda s=s: a(s)) for s in nxt]
        queue = []
        while fill or extra:
            if fill:
                queue.append(fill.pop(0))
            if extra:
                queue.append(extra.pop(0))
        per = max(1, -(-len(queue) // len(work)))
        for n, (t, ti) in enumerate(work):
            c = "0" if (first_zero and i == 0) else acc(ti, t)
            mfma(a, acc(ti, t), wreg(i % 2, t), B[ti], c)
            for _ in range(per):
                if queue:
                    queue.pop(0)()
        while queue:
            queue.pop(0)()


def interleave(a, streams):
    streams = [list(s) for s in streams]
    while any(streams):
        for s in streams:
            if s:
                a(s.pop(0))


def group_barrier(a, name, work=None):
    a.drain()
    a.barrier()
    a(f"s_add_u32 s{S_EPOCH}, s{S_EPOCH}, 1")
    skip, top, bail = a.newlabel(name + "_w"), a.newlabel(name + "_poll"), a.newlabel(name + "_bail")
    lf, lj = a.newlabel(name + "_slowst"), a.newlabel(name + "_st")
    li = a.newlabel(name + "_inv")
    a(f"s_cmp_lg_u32 s{S_WAVE}, 0")
    a.branch(f"s_cbranch_scc1 {skip}")
    a(f"s_lshl_b32 s{S_T0}, s{S_RB}, 8")
    a(f"s_add_u32 s{S_T0}, s{S_T0}, {WS.GRPFLAG}")
    add64(a, S_P0, S_WS, f"s{S_T0}")
    a(f"s_lshl_b32 s{S_T1}, s{S_MEM}, 2")
    a(f"v_mov_b32 v11, s{S_T1}")
    a(f"v_mov_b32 v12, s{S_EPOCH}")
    a(f"v_lshlrev_b32 v13, 2, v{V_LANE}")
    a("s_mov_b64 exec, 1")
    a(f"s_cmp_lg_u32 s{S_SLOW}, 0")
    a.branch(f"s_cbranch_scc1 {lf}")
    a(f"global_store_dword v11, v12, {sp(S_P0)}")
    a.vm = []
    a.branch(f"s_branch {lj}")
    a.label(lf)
    a("buffer_wbl2 sc1")
    a.drain()
    a(f"global_store_dword v11, v12, {sp(S_P0)} sc1")
    a.vm = []
    a.label(lj)
    a("s_mov_b64 exec, 0xffff")
    a(f"s_mov_b32 s{S_SPIN}, 0")
    a.label(top)
    a(f"global_load_dword v14, v13, {sp(S_P0)} sc1")
    a.force_wait("vmcnt(0)")
    a(f"v_cmp_gt_u32 vcc, s{S_EPOCH}, v14")
    a(f"s_add_u32 s{S_SPIN}, s{S_SPIN}, 1")
    a(f"s_cmp_gt_u32 s{S_SPIN}, {SPIN_MAX}")
    a.branch(f"s_cbranch_scc1 {bail}")
    a.branch(f"s_cbranch_vccnz {top}")
    a.label(bail)
    a("s_mov_b64 exec, -1")
    a(f"s_cmp_eq_u32 s{S_SLOW}, 0")
    a.branch(f"s_cbranch_scc1 {li}")
    a("buffer_inv sc1")
    a.drain()
    a.label(li)
    a.label(skip)
    a.barrier()


def poll_words(a, name, off_expr, nlanes):
    skip, top, bail = a.newlabel(name + "_w"), a.newlabel(name + "_poll"), a.newlabel(name + "_bail")
    a(f"s_cmp_lg_u32 s{S_WAVE}, 0")
    a.branch(f"s_cbranch_scc1 {skip}")
    off_expr()
    add64(a, S_P0, S_WS, f"s{S_T0}")
    a(f"s_mov_b32 s{S_SPIN}, 0")
    if nlanes == 16:
        a(f"v_lshlrev_b32 v13, 2, v{V_LANE}")
        a("s_mov_b64 exec, 0xffff")
    a.label(top)
    if nlanes == 16:
        a(f"global_load_dword v14, v13, {sp(S_P0)} sc1")
        a.force_wait("vmcnt(0)")
    else:
        a(f"global_load_dwordx4 v[16:19], v{V_L16}, {sp(S_P0)} sc1")
        a.force_wait("vmcnt(0)")
        a("v_min_u32 v16, v16, v17")
        a("v_min_u32 v18, v18, v19")
        a("v_min_u32 v14, v16, v18")
    a("v_cmp_eq_u32 vcc, 0, v14")
    a(f"s_add_u32 s{S_SPIN}, s{S_SPIN}, 1")
    a(f"s_cmp_gt_u32 s{S_SPIN}, {SPIN_MAX}")
    a.branch(f"s_cbranch_scc1 {bail}")
    a.branch(f"s_cbranch_vccnz {top}")
    a.label(bail)
    a("s_mov_b64 exec, -1")
    a.label(skip)
    a.barrier()


def stats_streams(raw, rstd, ext, tmp):
    s, ss = raw, raw + 1
    L = [f"v_add_f32 v{s}, v{s}, v{raw+2}", f"v_add_f32 v{ss}, v{ss}, v{raw+3}"]
    for sw in ("v_permlane16_swap_b32", "v_permlane32_swap_b32"):
        L += [f"v_mov_b32 v{tmp}, v{s}", f"v_mov_b32 v{tmp+1}, v{ss}",
              f"{sw} v{s}, v{tmp}", f"{sw} v{ss}, v{tmp+1}",
              f"v_add_f32 v{s}, v{s}, v{tmp}", f"v_add_f32 v{ss}, v{ss}, v{tmp+1}"]
    L += [f"v_mul_f32 v{s}, {f2u(-1.0/640)}, v{s}",
          f"v_mul_f32 v{ss}, {f2u(1.0/640)}, v{ss}",
          f"v_fma_f32 v{ss}, -v{s}, v{s}, v{ss}",
          f"v_max_f32 v{ss}, 0, v{ss}",
          f"v_add_f32 v{ss}, {f2u(1e-5)}, v{ss}",
          f"v_rsq_f32 v{rstd}, v{ss}",
          f"v_cvt_pk_bf16_f32 v{tmp}, v{s}, v{s}",
          f"v_and_b32 v{tmp}, 0xffff0000, v{tmp}",
          f"v_sub_f32 v{tmp}, v{s}, v{tmp}",
          f"v_cvt_pk_bf16_f32 v{ext}, v{s}, v{tmp}",
          f"v_mov_b32 v{ext+2}, 0",
          f"v_cvt_pk_bf16_f32 v{ext+1}, v{s}, v{ext+2}",
          f"v_mov_b32 v{ext+3}, 0"]
    return L


A_X, A_W, A_PHI = 0, 160, 208
V_ST, V_RS = 16, 24
V_ACC1, V_ACC2, V_EXT = 32, 80, 104


def feature_stream(acc_tiles, rstd, R):
    BA, BB, P, EP, EN, T = R, R + 4, R + 8, R + 20, R + 30, R + 40
    t0, t1, t2 = acc_tiles
    rs = f"v[{rstd}:{rstd+1}]"
    L = []
    for r in (t0, t0 + 2, t1, t1 + 2, t2):
        L.append(f"v_pk_mul_f32 v[{r}:{r+1}], v[{r}:{r+1}], {rs} op_sel_hi:[1,0]")
    L += [f"v_cvt_pk_bf16_f32 v{BA}, v{t0}, v{t0+1}", f"v_cvt_pk_bf16_f32 v{BA+1}, v{t0+2}, v{t0+3}",
          f"v_cvt_pk_bf16_f32 v{BA+2}, v{t1}, v{t1+1}", f"v_cvt_pk_bf16_f32 v{BA+3}, v{t1+2}, v{t1+3}",
          f"v_cvt_pk_bf16_f32 v{BB}, v{t2}, v{t2+1}",
          f"v_mov_b32 v{BB+1}, 0", f"v_mov_b32 v{BB+2}, 0", f"v_mov_b32 v{BB+3}, 0"]
    for t in range(3):
        L.append(f"v_mfma_f32_16x16x32_bf16 {vr(P+4*t)}, {ar(A_PHI+4*t)}, {vr(BA)}, 0")
    for t in range(3):
        L.append(f"v_mfma_f32_16x16x32_bf16 {vr(P+4*t)}, {ar(A_PHI+12+4*t)}, {vr(BB)}, {vr(P+4*t)}")
    p = [P + i for i in range(10)]
    mx, mn, tx, tn = T, T + 2, T + 4, T + 5
    for op, d in (("max", mx), ("min", mn)):
        L.append(f"v_{op}3_f32 v{d}, v{p[0]}, v{p[1]}, v{p[2]}")
        for i in (3, 5, 7):
            L.append(f"v_{op}3_f32 v{d}, v{d}, v{p[i]}, v{p[i+1]}")
        L.append(f"v_{op}_f32 v{d}, v{d}, v{p[9]}")
    L += [f"v_mov_b32 v{tx}, v{mx}", f"v_mov_b32 v{tn}, v{mn}",
          f"v_permlane16_swap_b32 v{mx}, v{tx}", f"v_permlane16_swap_b32 v{mn}, v{tn}",
          f"v_max_f32 v{mx}, v{mx}, v{tx}", f"v_min_f32 v{mn}, v{mn}, v{tn}",
          f"v_mul_f32 v{mx}, s{S_L2E}, v{mx}", f"v_mul_f32 v{mn}, s{S_L2E}, v{mn}"]
    for i in range(0, 10, 2):
        L.append(f"v_pk_fma_f32 v[{EP+i}:{EP+i+1}], v[{p[i]}:{p[i]+1}], {sp(S_L2E)}, v[{mx}:{mx+1}] "
                 f"op_sel_hi:[1,1,0] neg_lo:[0,0,1] neg_hi:[0,0,1]")
        L.append(f"v_pk_fma_f32 v[{EN+i}:{EN+i+1}], v[{p[i]}:{p[i]+1}], {sp(S_L2E)}, v[{mn}:{mn+1}] "
                 f"op_sel_hi:[1,1,0] neg_lo:[0,1,0] neg_hi:[0,1,0]")
    for i in range(10):
        L.append(f"v_exp_f32 v{EP+i}, v{EP+i}")
        L.append(f"v_exp_f32 v{EN+i}, v{EN+i}")
    sP, sN = T + 6, T + 8
    for E_, s_ in ((EP, sP), (EN, sN)):
        L.append(f"v_pk_add_f32 v[{s_}:{s_+1}], v[{E_}:{E_+1}], v[{E_+2}:{E_+3}]")
    for i in (4, 6, 8):
        for E_, s_ in ((EP, sP), (EN, sN)):
            L.append(f"v_pk_add_f32 v[{s_}:{s_+1}], v[{s_}:{s_+1}], v[{E_+i}:{E_+i+1}]")
    L += [f"v_add_f32 v{sP}, v{sP}, v{sP+1}", f"v_add_f32 v{sN}, v{sN}, v{sN+1}",
          f"v_mov_b32 v{tx}, v{sP}", f"v_mov_b32 v{tn}, v{sN}",
          f"v_permlane16_swap_b32 v{sP}, v{tx}", f"v_permlane16_swap_b32 v{sN}, v{tn}",
          f"v_add_f32 v{sP}, v{sP}, v{tx}", f"v_add_f32 v{sN}, v{sN}, v{tn}",
          f"v_rcp_f32 v{sP}, v{sP}", f"v_rcp_f32 v{sN}, v{sN}"]
    for i in range(0, 10, 2):
        L.append(f"v_pk_mul_f32 v[{EP+i}:{EP+i+1}], v[{EP+i}:{EP+i+1}], v[{sP}:{sP+1}] op_sel_hi:[1,0]")
        L.append(f"v_pk_mul_f32 v[{EN+i}:{EN+i+1}], v[{EN+i}:{EN+i+1}], v[{sN}:{sN+1}] op_sel_hi:[1,0]")
    out = [T + 6 + i for i in range(10)]
    for i in range(10):
        L.append(f"v_cvt_pk_bf16_f32 v{out[i]}, v{EP+2*i}, v{EP+2*i+1}")
    return L, out


def phi_image_writes(addr, out, imm):
    return [f"ds_write_b64 v{addr}, v[{out[2*i]}:{out[2*i+1]}] offset:{imm + 8*i}" for i in range(5)]


def k1(a, st):
    c = S_MEM
    R0, R1 = 112, 168
    stamp(a, st, 0)
    a(f"s_lshl_b32 s{S_TT0}, s{S_RB}, 3")
    a(f"s_lshl_b32 s{S_T0}, s{S_WAVE}, 1")
    a(f"s_add_u32 s{S_TT0}, s{S_TT0}, s{S_T0}")
    a(f"s_cmp_eq_u32 s{S_LAYER}, 0")
    a(f"s_mov_b32 s{S_T1}, {WS.X2}")
    a(f"s_cselect_b32 s{S_T1}, {WS.XF0}, s{S_T1}")
    a(f"s_mov_b32 s{S_T2}, {WS.ST2}")
    a(f"s_cselect_b32 s{S_T2}, {WS.ST0}, s{S_T2}")
    a(f"s_mul_i32 s{S_T0}, s{S_TT0}, {20*KB}")
    a(f"s_add_u32 s{S_T0}, s{S_T0}, s{S_T1}")
    a(f"s_add_u32 s{S_T0}, s{S_T0}, 4096")
    add64(a, S_XB, S_WS, f"s{S_T0}")
    a(f"s_lshl_b32 s{S_T0}, s{S_TT0}, 10")
    a(f"s_add_u32 s{S_T0}, s{S_T0}, s{S_T2}")
    add64(a, S_P0, S_WS, f"s{S_T0}")
    a(f"s_mul_i32 s{S_T0}, s{c}, {NKS*6*KB}")
    a(f"s_add_u32 s{S_T0}, s{S_T0}, {WS.WQKV1}")
    add64(a, S_WB, S_WS, f"s{S_T0}")
    a(f"s_mul_i32 s{S_T0}, s{c}, {6*KB}")
    a(f"s_add_u32 s{S_T0}, s{S_T0}, {WS.WPHI + 4096}")
    add64(a, S_P1, S_WS, f"s{S_T0}")
    a(f"s_mul_i32 s{S_T0}, s{c}, {NKS*3*KB}")
    a(f"s_add_u32 s{S_T0}, s{S_T0}, {WS.WQKV2}")
    add64(a, S_P2, S_WS, f"s{S_T0}")

    xreg = lambda ti, ks: ar(A_X + (ti * 20 + ks) * 4)
    xload = lambda ti, ks: act_load(a, xreg(ti, ks), S_XB, ti * 20 + ks)
    chunk_tok = {}

    def wchunk(q):
        ops = dma_frags(a, S_WB, 24 * q, 6 if q < 5 else 2, 24 * q)

        def last(f=ops[-1], q=q):
            f()
            chunk_tok[q] = a.vm_token()
        return ops[:-1] + [last]

    def xchunk(q):
        return [xload(ti, ks) for ks in range(4 * q, 4 * q + 4) for ti in range(2)]
    for q in range(2):
        for f in wchunk(q) + xchunk(q):
            f()
    for ti in range(2):
        a(f"global_load_dwordx4 {vr(V_ST + 4*ti)}, v{V_L16}, {sp(S_P0)} offset:{1024*ti} sc1")
    side = {}
    for q in range(2, 6):
        ops = wchunk(q) + (xchunk(q) if q < 5 else [])
        for n, f in enumerate(ops):
            side.setdefault(4 * (q - 2) + (n * 4) // len(ops), []).append(f)
    for n in range(6):
        side.setdefault(16 + n // 2, []).append(act_load(a, ar(A_PHI + 4 * n), S_P1, n, ""))
    stl = [stats_streams(V_ST + 4 * ti, V_RS + 2 * ti, V_EXT + 4 * ti, 28 + 2 * ti) for ti in range(2)]
    merged = [x for pair in zip(*stl) for x in pair]
    for n, ins in enumerate(merged):
        side.setdefault(12 + (n * 6) // len(merged), []).append(lambda ins=ins: a(ins))

    q2 = dma_frags(a, S_P2, 0, 16, 0)
    pre = {}
    for q in range(6):
        def p(q=q):
            a.wait_token(chunk_tok[q])
            a._put("s_barrier")
        pre[4 * q] = p
    tok2 = {}

    def p13():
        a.barrier()

    def q2last():
        q2[-1]()
        tok2[0] = a.vm_token()
    pre[13] = p13
    for n, f in enumerate(q2[:-1] + [q2last]):
        side.setdefault(13 + (n * 6) // 16, []).append(f)

    steps = [(ks, 6 * ks) for ks in range(NKS)]
    breg = lambda ks: [xreg(0, ks), xreg(1, ks)] if ks < 20 else [vr(V_EXT), vr(V_EXT + 4)]
    acc1 = lambda ti, t: vr(V_ACC1 + (ti * 6 + t) * 4)
    wreg = lambda s, t: ar(A_W + (s * 6 + t) * 4)
    gemm_pass(a, steps, 6, wreg, breg, acc1, pre, side)
    stamp(a, st, 1)
    a.barrier()

    a(f"v_lshrrev_b32 v11, 1, v{V_G}")
    a(f"v_and_b32 v12, 1, v{V_G}")
    a(f"v_lshlrev_b32 v13, 7, v11")
    a(f"s_lshl_b32 s{S_T0}, s{S_WAVE}, 5")
    a(f"v_add3_u32 v13, v13, v{V_J}, s{S_T0}")
    a(f"v_mul_u32_u24 v14, 80, v13")
    a(f"v_mul_u32_u24 v15, 40, v12")
    a(f"v_add_u32 v14, v14, v15")
    a(f"v_add_u32 v14, {LDS_PHI}, v14")
    a(f"v_lshlrev_b32 v15, 6, v13")
    a(f"v_lshlrev_b32 v12, 4, v12")
    a(f"v_add_u32 v15, v15, v12")
    a(f"v_add_u32 v15, {LDS_VIMG}, v15")
    strm = []
    for ti, R in ((0, R0), (1, R1)):
        b = V_ACC1 + ti * 24
        L, out = feature_stream((b, b + 4, b + 8), V_RS + 2 * ti, R)
        L += phi_image_writes(14, out, ti * 16 * 80)
        vb = b + 12
        rs = f"v[{V_RS+2*ti}:{V_RS+2*ti+1}]"
        for r in (vb, vb + 2, vb + 4, vb + 6, vb + 8):
            L.append(f"v_pk_mul_f32 v[{r}:{r+1}], v[{r}:{r+1}], {rs} op_sel_hi:[1,0]")
        W = R
        L += [f"v_cvt_pk_bf16_f32 v{W}, v{vb}, v{vb+1}", f"v_cvt_pk_bf16_f32 v{W+1}, v{vb+2}, v{vb+3}",
              f"v_cvt_pk_bf16_f32 v{W+2}, v{vb+4}, v{vb+5}", f"v_cvt_pk_bf16_f32 v{W+3}, v{vb+6}, v{vb+7}",
              f"v_mov_b32 v{W+5}, 1.0",
              f"v_cvt_pk_bf16_f32 v{W+4}, v{vb+8}, v{W+5}", f"v_cvt_pk_bf16_f32 v{W+6}, v{vb+9}, v{W+5}",
              f"v_mov_b32 v{W+5}, 0", f"v_mov_b32 v{W+7}, 0",
              f"ds_write_b128 v15, {vr(W)} offset:{ti*16*64}",
              f"ds_write_b128 v15, {vr(W+4)} offset:{ti*16*64 + 32}"]
        strm.append(L)
    interleave(a, strm)
    a.barrier()
    stamp(a, st, 2)

    a(f"s_lshr_b32 s{S_T0}, s{S_WAVE}, 1")
    a(f"s_and_b32 s{S_T1}, s{S_WAVE}, 1")
    a(f"v_bfe_u32 v11, v{V_LANE}, 2, 2")
    a(f"v_lshl_add_u32 v11, v{V_G}, 3, v11")
    a(f"s_lshl_b32 s{S_T2}, s{S_T0}, 7")
    a(f"v_add_u32 v11, s{S_T2}, v11")
    a(f"v_and_b32 v12, 3, v{V_LANE}")
    a(f"v_lshlrev_b32 v12, 3, v12")
    a(f"v_mul_u32_u24 v13, 80, v11")
    a(f"v_add_u32 v13, v13, v12")
    a(f"v_add_u32 v13, {LDS_PHI}, v13")
    a(f"v_lshlrev_b32 v14, 6, v11")
    a(f"s_lshl_b32 s{S_T2}, s{S_T1}, 5")
    a(f"s_add_u32 s{S_T2}, s{S_T2}, {LDS_VIMG}")
    a(f"v_add3_u32 v14, v14, v12, s{S_T2}")
    KA, KB_, KD = R0, R0 + 48, R0 + 64
    for kap in range(4):
        for x in range(2):
            a(f"ds_read_b64_tr_b16 v[{KB_+4*kap+2*x}:{KB_+4*kap+2*x+1}], v14 offset:{(32*kap + 4*x)*64}")
        for ft in range(3):
            r = KA + (kap * 3 + ft) * 4
            for x in range(2):
                a(f"ds_read_b64_tr_b16 v[{r+2*x}:{r+2*x+1}], v13 offset:{(32*kap + 4*x)*80 + 32*ft}")
    for kap in range(4):
        for ft in range(3):
            mfma(a, vr(KD + 4 * ft), vr(KA + (kap * 3 + ft) * 4), vr(KB_ + 4 * kap), "0" if kap == 0 else vr(KD + 4 * ft))
    a(f"v_lshrrev_b32 v11, 2, v{V_J}")
    a(f"v_lshlrev_b32 v11, 1, v11")
    a(f"v_and_b32 v12, 1, v{V_J}")
    a(f"v_add_u32 v11, v11, v12")
    a(f"v_lshl_add_u32 v11, v{V_G}, 3, v11")
    a(f"s_cmp_eq_u32 s{S_T1}, 1")
    a("s_cselect_b64 vcc, -1, 0")
    a(f"s_mov_b32 s{S_EX}, 0x33333333")
    a(f"s_cselect_b32 s{S_EX}, s{S_EX}, -1")
    a(f"s_mov_b32 s{S_EX+1}, s{S_EX}")
    a(f"s_mov_b32 s{S_EX2}, s{S_EX}")
    a(f"s_mov_b32 s{S_EX2+1}, 0")
    a(f"v_lshlrev_b32 v12, 4, v11")
    a(f"v_add_u32 v12, 1024, v12")
    a(f"v_cndmask_b32 v12, v{V_L16}, v12, vcc")
    a(f"v_lshlrev_b32 v13, 3, v11")
    a(f"v_add_u32 v13, 1792, v13")
    a(f"v_lshlrev_b32 v14, 3, v{V_LANE}")
    a(f"v_add_u32 v14, 1536, v14")
    a(f"v_cndmask_b32 v13, v14, v13, vcc")
    a(f"s_lshl_b32 s{S_T2}, s{S_LAYER}, 4")
    a(f"s_add_u32 s{S_T2}, s{S_T2}, s{c}")
    a(f"s_lshl_b32 s{S_T3}, s{S_T2}, 16")
    a(f"s_add_u32 s{S_T3}, s{S_T3}, {WS.KVP}")
    a(f"s_lshl_b32 s{S_T4}, s{S_RB}, 12")
    a(f"s_add_u32 s{S_T4}, s{S_T4}, s{S_T3}")
    a(f"s_mul_i32 s{S_T0}, s{S_T0}, 1920")
    a(f"s_add_u32 s{S_T4}, s{S_T4}, s{S_T0}")
    add64(a, S_P0, S_WS, f"s{S_T4}")
    add64(a, S_P1, S_WS, f"s{S_T3}")
    PK = R0 + 76
    for n, (t, r) in enumerate(((0, 0), (0, 2), (1, 0), (1, 2), (2, 0), (2, 2))):
        a(f"v_cvt_pk_bf16_f32 v{PK+n}, v{KD+4*t+r}, v{KD+4*t+r+1}")
    a(f"s_mov_b64 exec, {sp(S_EX)}")
    a(f"global_store_dwordx4 v12, {vr(PK)}, {sp(S_P0)} sc1")
    a(f"s_mov_b64 exec, {sp(S_EX2)}")
    a(f"global_store_dwordx2 v13, v[{PK+4}:{PK+5}], {sp(S_P0)} sc1")
    a("s_mov_b64 exec, -1")
    a.drain()
    a.barrier()
    skip = a.newlabel("kvsig")
    a(f"s_cmp_lg_u32 s{S_WAVE}, 0")
    a.branch(f"s_cbranch_scc1 {skip}")
    a(f"s_lshl_b32 s{S_T2}, s{S_T2}, 8")
    a(f"s_lshl_b32 s{S_T0}, s{S_RB}, 2")
    a(f"s_add_u32 s{S_T2}, s{S_T2}, s{S_T0}")
    a(f"s_add_u32 s{S_T2}, s{S_T2}, {WS.KVFLAG}")
    a(f"v_mov_b32 v11, s{S_T2}")
    a("v_mov_b32 v12, 1")
    a("s_mov_b64 exec, 1")
    a(f"global_store_dword v11, v12, {sp(S_WS)} sc1")
    a("s_mov_b64 exec, -1")
    a.drain()
    a.label(skip)
    stamp(a, st, 3)

    a.wait_token(tok2[0])
    a.barrier()
    steps = [(ks, 3 * ks) for ks in range(NKS)]
    acc2 = lambda ti, t: vr(V_ACC2 + (ti * 3 + t) * 4)
    wreg2 = lambda s, t: ar(A_W + (s * 3 + t) * 4)
    gemm_pass(a, steps, 3, wreg2, breg, acc2)
    stamp(a, st, 4)
    a(f"v_lshrrev_b32 v11, 1, v{V_G}")
    a(f"v_and_b32 v12, 1, v{V_G}")
    a(f"v_lshlrev_b32 v13, 7, v11")
    a(f"s_lshl_b32 s{S_T0}, s{S_WAVE}, 5")
    a(f"v_add3_u32 v13, v13, v{V_J}, s{S_T0}")
    a(f"v_mul_u32_u24 v14, 80, v13")
    a(f"v_mul_u32_u24 v15, 40, v12")
    a(f"v_add_u32 v14, v14, v15")
    a(f"v_add_u32 v14, {LDS_PHI}, v14")
    strm = []
    for ti, R in ((0, R0), (1, R1)):
        b = V_ACC2 + ti * 12
        L, out = feature_stream((b, b + 4, b + 8), V_RS + 2 * ti, R)
        L += phi_image_writes(14, out, ti * 16 * 80)
        strm.append(L)
    interleave(a, strm)
    stamp(a, st, 5)

    def kvoff():
        a(f"s_lshl_b32 s{S_T0}, s{S_LAYER}, 4")
        a(f"s_add_u32 s{S_T0}, s{S_T0}, s{c}")
        a(f"s_lshl_b32 s{S_T0}, s{S_T0}, 8")
        a(f"s_add_u32 s{S_T0}, s{S_T0}, {WS.KVFLAG}")
    a.drain()
    poll_words(a, "kv", kvoff, 16)
    stamp(a, st, 6)
    G0, SEL, GD = R0, R0 + 64, R0 + 68
    a(f"v_lshlrev_b32 v11, 12, v{V_G}")
    a(f"v_lshl_add_u32 v11, v{V_J}, 4, v11")
    a(f"s_lshl_b32 s{S_T0}, s{S_WAVE}, 8")
    a(f"v_add_u32 v11, s{S_T0}, v11")
    for q in range(4):
        a(f"v_add_u32 v{12+q}, {q*16384}, v11")
    for n in range(4):
        for q in range(4):
            a(f"global_load_dwordx4 {vr(G0 + (n*4 + q)*4)}, v{12+q}, {sp(S_P1)} offset:{n*1024} sc1")
    for q in range(4):
        a(f"v_cmp_eq_u32 vcc, {2*q}, v{V_J}")
        a(f"v_cndmask_b32 v28, 0, 1, vcc")
        a(f"v_cmp_eq_u32 vcc, {2*q+1}, v{V_J}")
        a(f"v_cndmask_b32 v29, 0, 1, vcc")
        a(f"v_mul_u32_u24 v28, 0x3f80, v28")
        a(f"v_mul_u32_u24 v29, 0x3f80, v29")
        a(f"v_lshl_or_b32 v{SEL+q}, v29, 16, v28")
    for n in range(4):
        for q in range(4):
            mfma(a, vr(GD + 4 * n), vr(SEL), vr(G0 + (n * 4 + q) * 4), "0" if q == 0 else vr(GD + 4 * n))
    a(f"v_lshlrev_b32 v11, 4, v{V_J}")
    a(f"v_lshl_add_u32 v11, v{V_G}, 3, v11")
    a(f"s_lshl_b32 s{S_T0}, s{S_WAVE}, 8")
    a(f"s_add_u32 s{S_T0}, s{S_T0}, {LDS_KVF}")
    a(f"v_add_u32 v11, s{S_T0}, v11")
    for n in range(4):
        a(f"v_cvt_pk_bf16_f32 v{G0+2*n}, v{GD+4*n}, v{GD+4*n+1}")
        a(f"v_cvt_pk_bf16_f32 v{G0+2*n+1}, v{GD+4*n+2}, v{GD+4*n+3}")
    a("s_mov_b32 exec_hi, 0")
    for n in range(4):
        a(f"ds_write_b64 v11, v[{G0+2*n}:{G0+2*n+1}] offset:{n*1024}")
    a("s_mov_b64 exec, -1")
    a.barrier()

    KF = R0
    a(f"v_lshrrev_b32 v11, 2, v{V_J}")
    a(f"v_lshlrev_b32 v11, 1, v11")
    a(f"v_and_b32 v12, 1, v{V_J}")
    a(f"v_add_u32 v11, v11, v12")
    a(f"v_lshl_add_u32 v11, v{V_G}, 3, v11")
    a(f"v_lshlrev_b32 v12, 4, v11")
    a(f"v_add_u32 v12, {LDS_KVF + 1024}, v12")
    a(f"v_lshlrev_b32 v13, 3, v11")
    a(f"v_add_u32 v13, {LDS_KVF + 1792}, v13")
    a(f"v_lshlrev_b32 v14, 3, v{V_LANE}")
    a(f"v_add_u32 v14, {LDS_KVF + 1536}, v14")
    a(f"v_add_u32 v15, {LDS_KVF}, v{V_L16}")
    for hh in range(2):
        for r in range(8, 16):
            a(f"v_mov_b32 v{KF + 16*hh + r}, 0")
    for hh in range(2):
        b = KF + 16 * hh
        a(f"ds_read_b128 {vr(b)}, v15 offset:{hh*1920}")
        a(f"ds_read_b128 {vr(b+4)}, v12 offset:{hh*1920}")
    a("s_mov_b32 exec_hi, 0")
    for hh in range(2):
        b = KF + 16 * hh
        a(f"ds_read_b64 v[{b+8}:{b+9}], v14 offset:{hh*1920}")
        a(f"ds_read_b64 v[{b+12}:{b+13}], v13 offset:{hh*1920}")
    a("s_mov_b64 exec, -1")
    QF = R0 + 32
    a(f"s_lshl_b32 s{S_T0}, s{S_WAVE}, 5")
    a(f"v_add_u32 v11, s{S_T0}, v{V_J}")
    a(f"v_mul_u32_u24 v11, 80, v11")
    a(f"v_lshl_add_u32 v11, v{V_G}, 3, v11")
    a(f"v_add_u32 v11, {LDS_PHI}, v11")
    for ti in range(2):
        for hh in range(2):
            b = QF + (ti * 2 + hh) * 8
            a(f"v_mov_b32 v{b+6}, 0")
            a(f"v_mov_b32 v{b+7}, 0")
    for ti in range(2):
        for hh in range(2):
            b = QF + (ti * 2 + hh) * 8
            off = (hh * 128 + 16 * ti) * 80
            assert off % 8 == 0
            if off // 8 + 4 <= 255:
                a(f"ds_read2_b64 {vr(b)}, v11 offset0:{off//8} offset1:{off//8 + 4}")
            else:
                a(f"ds_read_b64 v[{b}:{b+1}], v11 offset:{off}")
                a(f"ds_read_b64 v[{b+2}:{b+3}], v11 offset:{off + 32}")
            a(f"ds_read_b64 v[{b+4}:{b+5}], v11 offset:{off + 64}")
    OD = R0 + 64
    for ti in range(2):
        for hh in range(2):
            kb, qb, o = KF + 16 * hh, QF + (ti * 2 + hh) * 8, OD + (ti * 2 + hh) * 8
            mfma(a, vr(o), vr(kb), vr(qb), "0")
            mfma(a, vr(o + 4), vr(kb + 4), vr(qb), "0")
    for ti in range(2):
        for hh in range(2):
            kb, qb, o = KF + 16 * hh, QF + (ti * 2 + hh) * 8, OD + (ti * 2 + hh) * 8
            mfma(a, vr(o), vr(kb + 8), vr(qb + 4), vr(o))
            mfma(a, vr(o + 4), vr(kb + 12), vr(qb + 4), vr(o + 4))
    a(f"s_mul_i32 s{S_T0}, s{S_LAYER}, {128*20*KB}")
    a(f"s_mul_i32 s{S_T1}, s{S_TT0}, {20*KB}")
    a(f"s_add_u32 s{S_T0}, s{S_T0}, s{S_T1}")
    a(f"s_add_u32 s{S_T0}, s{S_T0}, {WS.O}")
    a(f"s_lshl_b32 s{S_T1}, s{c}, 10")
    a(f"s_add_u32 s{S_T1}, s{S_T1}, s{S_T0}")
    add64(a, S_P0, S_WS, f"s{S_T1}")
    add64(a, S_P1, S_P0, 20 * KB)
    a(f"s_lshr_b32 s{S_T1}, s{c}, 2")
    a(f"s_add_u32 s{S_T1}, s{S_T1}, 16")
    a(f"s_lshl_b32 s{S_T1}, s{S_T1}, 10")
    a(f"s_add_u32 s{S_T1}, s{S_T1}, s{S_T0}")
    a(f"s_and_b32 s{S_T2}, s{c}, 3")
    a(f"s_lshl_b32 s{S_T2}, s{S_T2}, 2")
    a(f"s_add_u32 s{S_T1}, s{S_T1}, s{S_T2}")
    add64(a, S_P2, S_WS, f"s{S_T1}")
    add64(a, S_P3, S_P2, 20 * KB)
    OP = R0
    for ti in range(2):
        vals = []
        for hh in range(2):
            o = OD + (ti * 2 + hh) * 8
            a(f"v_add_f32 v{o+5}, {f2u(1e-6)}, v{o+5}")
            a(f"v_rcp_f32 v{o+5}, v{o+5}")
        for hh in range(2):
            o = OD + (ti * 2 + hh) * 8
            for m in range(5):
                a(f"v_mul_f32 v{o+m}, v{o+m}, v{o+5}")
                vals.append(o + m)
        for n in range(5):
            a(f"v_cvt_pk_bf16_f32 v{OP + 8*ti + n}, v{vals[2*n]}, v{vals[2*n+1]}")
        a(f"global_store_dwordx4 v{V_L16}, {vr(OP + 8*ti)}, {sp(S_P0 if ti == 0 else S_P1)}")
        a(f"global_store_dword v{V_L16}, v{OP + 8*ti + 4}, {sp(S_P2 if ti == 0 else S_P3)}")
    stamp(a, st, 7)


def out_proj(a, st, name, nks, wbase, act_base, act_stride, res_base, dst_base, st_base, ring_ks, chunk_ks,
             final_possible, stamp0):
    A_B, A_WW = 0, 192
    V_ACC, V_RES = 32, 56
    stamp(a, st, stamp0)
    a(f"s_lshr_b32 s{S_TH}, s{S_MEM}, 3")
    a(f"s_and_b32 s{S_CT}, s{S_MEM}, 7")
    a(f"s_lshl_b32 s{S_TT0}, s{S_RB}, 3")
    a(f"s_lshl_b32 s{S_T0}, s{S_TH}, 2")
    a(f"s_add_u32 s{S_TT0}, s{S_TT0}, s{S_T0}")
    a(f"s_add_u32 s{S_TT0}, s{S_TT0}, s{S_WAVE}")
    a(f"s_mul_i32 s{S_T0}, s{S_CT}, {nks*5*KB}")
    a(f"s_add_u32 s{S_T0}, s{S_T0}, {wbase}")
    add64(a, S_WB, S_WS, f"s{S_T0}")
    act_base()
    a(f"s_mul_i32 s{S_T1}, s{S_TT0}, {nks*KB}")
    a(f"s_add_u32 s{S_T0}, s{S_T0}, s{S_T1}")
    a(f"s_add_u32 s{S_T0}, s{S_T0}, 4096")
    add64(a, S_XB, S_WS, f"s{S_T0}")
    a(f"s_lshr_b32 s{S_T2}, s{S_CT}, 1")
    a(f"s_mul_i32 s{S_T2}, s{S_T2}, 5")
    a(f"s_and_b32 s{S_T3}, s{S_CT}, 1")
    a(f"s_mul_i32 s{S_T4}, s{S_T3}, 3")
    a(f"s_add_u32 s{S_T4}, s{S_T4}, s{S_T2}")
    a(f"s_add_u32 s{S_T2}, s{S_T2}, 2")
    a(f"s_mul_i32 s{S_T5}, s{S_TT0}, 20")
    a(f"s_add_u32 s{S_T4}, s{S_T4}, s{S_T5}")
    a(f"s_lshl_b32 s{S_T4}, s{S_T4}, 10")
    a(f"s_add_u32 s{S_T2}, s{S_T2}, s{S_T5}")
    a(f"s_lshl_b32 s{S_T2}, s{S_T2}, 10")
    a(f"s_lshl_b32 s{S_T3}, s{S_T3}, 9")
    a(f"s_add_u32 s{S_T2}, s{S_T2}, s{S_T3}")
    a(f"s_mov_b32 s74, s{S_T4}")
    a(f"s_mov_b32 s75, s{S_T2}")
    a(f"v_lshrrev_b32 v11, 1, v{V_G}")
    a(f"v_lshlrev_b32 v11, 8, v11")
    a(f"v_lshl_add_u32 v11, v{V_J}, 4, v11")
    a(f"v_and_b32 v12, 1, v{V_G}")
    a(f"v_lshl_add_u32 v11, v12, 3, v11")
    res_base()
    a(f"s_add_u32 s{S_T1}, s{S_T0}, s74")
    add64(a, S_P0, S_WS, f"s{S_T1}")
    a(f"s_add_u32 s{S_T1}, s{S_T0}, s75")
    add64(a, S_P1, S_WS, f"s{S_T1}")

    nchunks = nks // chunk_ks
    cf = chunk_ks * 5
    assert cf % 4 == 0
    ring_chunks = ring_ks // chunk_ks
    chunk_tok = {}
    breg = lambda ks: ar(A_B + 4 * ks)

    def wchunk(q):
        ops = dma_frags(a, S_WB, cf * q, cf // 4, cf * (q % ring_chunks))

        def last(f=ops[-1], q=q):
            f()
            chunk_tok[q] = a.vm_token()
        return ops[:-1] + [last]

    def xchunk(q):
        out = []
        for ks in range(chunk_ks * q, chunk_ks * (q + 1)):
            if ks < 40:
                out.append(act_load(a, breg(ks), S_XB, ks))
            else:
                out.append(lambda ks=ks: a(f"global_load_dwordx4 {breg(ks)}, v{V_O8K + (ks-40)//8}, {sp(S_P2)} "
                                           f"offset:{((ks-40) % 8)*1024 - 4096} sc1"))
        return out
    if nks > 40:
        add64(a, S_P2, S_XB, 40 * KB)
    ahead = min(2, nchunks)
    for q in range(ahead):
        for f in wchunk(q) + xchunk(q):
            f()
    side, pre = {}, {}
    for q in range(ahead, nchunks):
        ops = (wchunk(q) if True else []) + xchunk(q)
        if q < ring_chunks:
            start = chunk_ks * (q - ahead)
        else:
            start = chunk_ks * (q - ring_chunks + 1)
        for n, f in enumerate(ops):
            side.setdefault(start + (n * chunk_ks) // len(ops), []).append(f)
    last_side = max(side) if side else 0
    side.setdefault(min(nks - 1, last_side + 1), []).extend([
        lambda: a(f"global_load_dwordx4 {vr(V_RES)}, v{V_L16}, {sp(S_P0)} sc1"),
        lambda: a(f"global_load_dwordx4 {vr(V_RES+4)}, v{V_L16}, {sp(S_P0)} offset:1024 sc1"),
        lambda: a(f"global_load_dwordx2 v[{V_RES+8}:{V_RES+9}], v11, {sp(S_P1)} sc1")])
    for q in range(nchunks):
        def p(q=q):
            a.wait_token(chunk_tok[q])
            a.barrier()
        pre[chunk_ks * q] = p
    steps = [(ks, (ks % ring_ks) * 5) for ks in range(nks)]
    acc = lambda ti, t: vr(V_ACC + 4 * t)
    wreg = lambda s, t: ar(A_WW + (s * 5 + t) * 4)
    gemm_pass(a, steps, 5, wreg, lambda ks: [breg(ks)], acc, pre, side)
    stamp(a, st, stamp0 + 1)

    X = 72
    for n in range(10):
        r = V_RES + n
        t, e = (n // 2, (n % 2) * 2)
        a(f"v_lshlrev_b32 v{X+2*n}, 16, v{r}")
        a(f"v_and_b32 v{X+2*n+1}, 0xffff0000, v{r}")
    for n in range(10):
        a(f"v_pk_add_f32 v[{X+2*n}:{X+2*n+1}], v[{X+2*n}:{X+2*n+1}], v[{V_ACC+2*n}:{V_ACC+2*n+1}]")
    PK = 96
    for n in range(10):
        a(f"v_cvt_pk_bf16_f32 v{PK+n}, v{X+2*n}, v{X+2*n+1}")
    fin, join = a.newlabel(name + "_fin"), a.newlabel(name + "_join")
    if final_possible:
        a.drain()
        a(f"s_cmp_eq_u32 s{S_LAYER}, 1")
        a.branch(f"s_cbranch_scc1 {fin}")
    dst_base()
    a(f"s_add_u32 s{S_T1}, s{S_T0}, s74")
    add64(a, S_P0, S_WS, f"s{S_T1}")
    a(f"s_add_u32 s{S_T1}, s{S_T0}, s75")
    add64(a, S_P1, S_WS, f"s{S_T1}")
    a(f"global_store_dwordx4 v{V_L16}, {vr(PK)}, {sp(S_P0)}")
    a(f"global_store_dwordx4 v{V_L16}, {vr(PK+4)}, {sp(S_P0)} offset:1024")
    a(f"global_store_dwordx2 v11, v[{PK+8}:{PK+9}], {sp(S_P1)}")
    s_, ss = 108, 110
    a(f"v_pk_add_f32 v[{s_}:{s_+1}], v[{X}:{X+1}], v[{X+2}:{X+3}]")
    a(f"v_pk_mul_f32 v[{ss}:{ss+1}], v[{X}:{X+1}], v[{X}:{X+1}]")
    a(f"v_pk_fma_f32 v[{ss}:{ss+1}], v[{X+2}:{X+3}], v[{X+2}:{X+3}], v[{ss}:{ss+1}]")
    for n in range(2, 10):
        a(f"v_pk_add_f32 v[{s_}:{s_+1}], v[{s_}:{s_+1}], v[{X+2*n}:{X+2*n+1}]")
        a(f"v_pk_fma_f32 v[{ss}:{ss+1}], v[{X+2*n}:{X+2*n+1}], v[{X+2*n}:{X+2*n+1}], v[{ss}:{ss+1}]")
    a(f"v_add_f32 v{s_}, v{s_}, v{s_+1}")
    a(f"v_add_f32 v{s_+1}, v{ss}, v{ss+1}")
    reduce_groups(a, [s_, s_ + 1], 112)
    st_base()
    a(f"s_lshl_b32 s{S_T1}, s{S_TT0}, 10")
    a(f"s_add_u32 s{S_T0}, s{S_T0}, s{S_T1}")
    a(f"s_lshr_b32 s{S_T1}, s{S_CT}, 1")
    a(f"s_lshl_b32 s{S_T1}, s{S_T1}, 8")
    a(f"s_add_u32 s{S_T0}, s{S_T0}, s{S_T1}")
    a(f"s_and_b32 s{S_T1}, s{S_CT}, 1")
    a(f"s_lshl_b32 s{S_T1}, s{S_T1}, 3")
    a(f"s_add_u32 s{S_T0}, s{S_T0}, s{S_T1}")
    add64(a, S_P2, S_WS, f"s{S_T0}")
    a("s_mov_b64 exec, 0xffff")
    a(f"global_store_dwordx2 v{V_L16}, v[{s_}:{s_+1}], {sp(S_P2)}")
    a("s_mov_b64 exec, -1")
    if final_possible:
        a.drain()
        a.branch(f"s_branch {join}")
        a.label(fin)
        a(f"s_mul_i32 s{S_T0}, s{S_TT0}, {16*1280}")
        a(f"s_mul_i32 s{S_T1}, s{S_CT}, 160")
        a(f"s_add_u32 s{S_T0}, s{S_T0}, s{S_T1}")
        a(f"s_and_b32 s{S_T2}, s{S_CT}, 1")
        a(f"s_lshl_b32 s{S_T3}, s{S_T2}, 5")
        a(f"s_add_u32 s{S_T3}, s{S_T3}, s{S_T0}")
        add64(a, S_P0, S_OUT, f"s{S_T3}")
        a(f"s_cmp_eq_u32 s{S_T2}, 0")
        a(f"s_cselect_b32 s{S_T3}, 128, 0")
        a(f"s_add_u32 s{S_T3}, s{S_T3}, s{S_T0}")
        add64(a, S_P1, S_OUT, f"s{S_T3}")
        a(f"v_mul_u32_u24 v12, 1280, v{V_J}")
        a(f"v_lshl_add_u32 v13, v{V_G}, 4, v12")
        a(f"v_lshl_add_u32 v14, v{V_G}, 3, v12")
        a(f"global_store_dwordx4 v13, {vr(PK)}, {sp(S_P0)}")
        a(f"global_store_dwordx4 v13, {vr(PK+4)}, {sp(S_P0)} offset:64")
        a(f"global_store_dwordx2 v14, v[{PK+8}:{PK+9}], {sp(S_P1)}")
        a.drain()
        a.label(join)
    stamp(a, st, stamp0 + 2)


def layer_off(a, base, stride):
    def f():
        a(f"s_mul_i32 s{S_T0}, s{S_LAYER}, {stride}")
        a(f"s_add_u32 s{S_T0}, s{S_T0}, {base}")
    return f


def sel_layer(a, base0, base1):
    def f():
        a(f"s_cmp_eq_u32 s{S_LAYER}, 0")
        a(f"s_mov_b32 s{S_T0}, {base1}")
        a(f"s_cselect_b32 s{S_T0}, {base0}, s{S_T0}")
    return f


def const_off(a, base):
    return lambda: a(f"s_mov_b32 s{S_T0}, {base}")


def k2(a, st):
    out_proj(a, st, "k2", 20, WS.WO, layer_off(a, WS.O, 128 * 20 * KB), 20, sel_layer(a, WS.XF0, WS.X2),
             layer_off(a, WS.X1, 128 * 20 * KB), layer_off(a, WS.ST1, 128 * KB), 20, 4, False, 8)


def k4(a, st):
    out_proj(a, st, "k4", 48, WS.WD, layer_off(a, WS.HH, 128 * 48 * KB), 48, layer_off(a, WS.X1, 128 * 20 * KB),
             const_off(a, WS.X2), const_off(a, WS.ST2), 24, 4, True, 14)


def k3(a, st):
    m = S_MEM
    A_WW = 160
    V_ACC = 32
    stamp(a, st, 11)
    a(f"s_lshl_b32 s{S_TT0}, s{S_RB}, 3")
    a(f"s_lshl_b32 s{S_T0}, s{S_WAVE}, 1")
    a(f"s_add_u32 s{S_TT0}, s{S_TT0}, s{S_T0}")
    layer_off(a, WS.X1, 128 * 20 * KB)()
    a(f"s_mul_i32 s{S_T1}, s{S_TT0}, {20*KB}")
    a(f"s_add_u32 s{S_T0}, s{S_T0}, s{S_T1}")
    a(f"s_add_u32 s{S_T0}, s{S_T0}, 4096")
    add64(a, S_XB, S_WS, f"s{S_T0}")
    layer_off(a, WS.ST1, 128 * KB)()
    a(f"s_lshl_b32 s{S_T1}, s{S_TT0}, 10")
    a(f"s_add_u32 s{S_T0}, s{S_T0}, s{S_T1}")
    add64(a, S_P0, S_WS, f"s{S_T0}")
    a(f"s_mul_i32 s{S_T0}, s{m}, {3*NKS*4*KB}")
    a(f"s_add_u32 s{S_T0}, s{S_T0}, {WS.WGU}")
    add64(a, S_WB, S_WS, f"s{S_T0}")
    layer_off(a, WS.HH, 128 * 48 * KB)()
    a(f"s_mul_i32 s{S_T1}, s{S_TT0}, {48*KB}")
    a(f"s_add_u32 s{S_T0}, s{S_T0}, s{S_T1}")
    a(f"s_mul_i32 s{S_T1}, s{m}, {3*KB}")
    a(f"s_add_u32 s{S_T0}, s{S_T0}, s{S_T1}")
    add64(a, S_P1, S_WS, f"s{S_T0}")
    add64(a, S_P2, S_P1, 48 * KB)
    c0 = -2.0 * LOG2E * 0.7978845608028654
    a(f"s_mov_b32 s{S_C0}, {f2u(c0)}")
    a(f"s_mov_b32 s{S_C0+1}, {f2u(c0)}")
    a(f"s_mov_b32 s{S_C1}, {f2u(c0*0.044715)}")
    a(f"s_mov_b32 s{S_C1+1}, {f2u(c0*0.044715)}")

    xreg = lambda ti, ks: ar((ti * 20 + ks) * 4)
    xload = lambda ti, ks: act_load(a, xreg(ti, ks), S_XB, ti * 20 + ks)
    CH = 7
    RING = 4
    nchunks = 9
    chunk_tok = {}

    def wchunk(q):
        ops = dma_frags(a, S_WB, 28 * q, 7, 28 * (q % RING))

        def last(f=ops[-1], q=q):
            f()
            chunk_tok[q] = a.vm_token()
        return ops[:-1] + [last]
    for f in wchunk(0):
        f()
    for ks in range(7):
        for ti in range(2):
            xload(ti, ks)()
    for f in wchunk(1):
        f()
    for ti in range(2):
        a(f"global_load_dwordx4 {vr(V_ST + 4*ti)}, v{V_L16}, {sp(S_P0)} offset:{1024*ti} sc1")
    side, pre = {}, {}
    xs = [xload(ti, ks) for ks in range(7, 20) for ti in range(2)]
    for n, f in enumerate(xs):
        side.setdefault((n * 5) // len(xs), []).append(f)
    for q in range(2, nchunks):
        start = CH * (q - RING + 1) if q >= RING else CH * (q - 2) + 1
        for n, f in enumerate(wchunk(q)):
            side.setdefault(start + (n * 5) // 7, []).append(f)
    stl = [stats_streams(V_ST + 4 * ti, V_RS + 2 * ti, V_EXT + 4 * ti, 28 + 2 * ti) for ti in range(2)]
    merged = [x for pair in zip(*stl) for x in pair]
    for n, ins in enumerate(merged):
        side.setdefault(8 + (n * 6) // len(merged), []).append(lambda ins=ins: a(ins))
    for q in range(nchunks):
        def p(q=q):
            a.wait_token(chunk_tok[q])
            a.barrier()
        pre[CH * q] = p
    wreg = lambda s, t: ar(A_WW + (s * 4 + t) * 4)

    def epilogue_stream(u, ti, R):
        b = V_ACC + (u % 2) * 32 + ti * 16
        rs = f"v[{V_RS+2*ti}:{V_RS+2*ti+1}]"
        L = []
        T = R
        outs = []
        for p in range(2):
            for h in range(2):
                g_, u_ = b + 8 * p + 2 * h, b + 8 * p + 4 + 2 * h
                x2, e = T + 4 * (2 * p + h), T + 4 * (2 * p + h) + 2
                G, U, X2, E = (f"v[{r}:{r+1}]" for r in (g_, u_, x2, e))
                L += [f"v_pk_mul_f32 {G}, {G}, {rs} op_sel_hi:[1,0]",
                      f"v_pk_mul_f32 {U}, {U}, {rs} op_sel_hi:[1,0]",
                      f"v_pk_mul_f32 {X2}, {G}, {G}",
                      f"v_pk_mul_f32 {X2}, {X2}, {sp(S_C1)}",
                      f"v_pk_add_f32 {X2}, {X2}, {sp(S_C0)}",
                      f"v_pk_mul_f32 {E}, {G}, {X2}",
                      f"v_exp_f32 v{e}, v{e}", f"v_exp_f32 v{e+1}, v{e+1}",
                      f"v_pk_mul_f32 {U}, {U}, {G}",
                      f"v_add_f32 v{e}, 1.0, v{e}", f"v_add_f32 v{e+1}, 1.0, v{e+1}",
                      f"v_rcp_f32 v{e}, v{e}", f"v_rcp_f32 v{e+1}, v{e+1}",
                      f"v_pk_mul_f32 {U}, {U}, {E}"]
                outs.append(u_)
        O = T + 16
        for n, r in enumerate(outs):
            L.append(f"v_cvt_pk_bf16_f32 v{O+n}, v{r}, v{r+1}")
        L.append(f"global_store_dwordx4 v{V_L16}, {vr(O)}, {sp(S_P1 if ti == 0 else S_P2)} offset:{u*1024}")
        return L

    for u in range(3):
        steps = [(ks, ((u * NKS + ks) % (CH * RING)) * 4) for ks in range(NKS)]
        breg = lambda ks: [xreg(0, ks), xreg(1, ks)] if ks < 20 else [vr(V_EXT), vr(V_EXT + 4)]
        acc = lambda ti, t, u=u: vr(V_ACC + (u % 2) * 32 + ti * 16 + 4 * t)
        pre_u = {i: pre[u * NKS + i] for i in range(NKS) if (u * NKS + i) in pre}
        side_u = {i: side[u * NKS + i] for i in range(NKS) if (u * NKS + i) in side}
        gemm_pass(a, steps, 4, wreg, breg, acc, pre_u, side_u)
        interleave(a, [epilogue_stream(u, 0, 112), epilogue_stream(u, 1, 136)])
    stamp(a, st, 12)


def main(a, stop=None, stamps=False):
    st = stamps
    for k in range(5):
        a(f"v_add_u32 v{V_O8K+k}, {8192*k}, v{V_L16}")
    a(f"v_add_u32 v{V_L16H}, 65536, v{V_L16}")
    a(f"s_mov_b32 s{S_L2E}, {f2u(LOG2E)}")
    a(f"s_mov_b32 s{S_L2E+1}, {f2u(LOG2E)}")
    a(f"s_mov_b32 s{S_EPOCH}, 0")
    a(f"s_mov_b32 s{S_LAYER}, 0")
    top = "L_layer"
    a.drain()
    a.label(top)
    k1(a, st)
    if stop == "k1":
        return
    group_barrier(a, "gb1")
    lpb = a.newlabel("pbskip")
    a(f"s_cmp_lg_u32 s{S_LAYER}, 0")
    a.branch(f"s_cbranch_scc1 {lpb}")
    poll_words(a, "pb", lambda: a(f"s_mov_b32 s{S_T0}, {WS.PBFLAG}"), 256)
    a.label(lpb)
    k2(a, st)
    if stop == "k2":
        return
    group_barrier(a, "gb2")
    k3(a, st)
    if stop == "k3":
        return
    group_barrier(a, "gb3")
    k4(a, st)
    if stop == "k4":
        return
    a(f"s_cmp_eq_u32 s{S_LAYER}, 1")
    end = a.newlabel("end")
    a.drain()
    a.branch(f"s_cbranch_scc1 {end}")
    group_barrier(a, "gb4")
    a(f"s_mov_b32 s{S_LAYER}, 1")
    a.branch(f"s_branch {top}")
    a.label(end)
```

```python
from layout import WS, KB, NKS

S_X, S_WQKV, S_WPHI, S_WO, S_WG, S_WU, S_WD, S_OUT, S_DBG, S_WS = 4, 6, 8, 10, 12, 14, 16, 18, 20, 22
S_WAVE, S_RB, S_MEM, S_SLOW, S_LAYER, S_EPOCH = 24, 25, 26, 27, 28, 29
V_TID, V_LANE, V_L16, V_J, V_G = 0, 1, 2, 3, 4

LDS_A, LDS_B = 0, 32768


def sp(n):
    return f"s[{n}:{n+1}]"


def vr(n, k=4):
    return f"v[{n}:{n+k-1}]"


def ar(n, k=4):
    return f"a[{n}:{n+k-1}]"


def add64(a, dst, src, off):
    a(f"s_add_u32 s{dst}, s{src}, {off}")
    a(f"s_addc_u32 s{dst+1}, s{src+1}, 0")


def prologue(a, done_label):
    a("s_cmp_ge_u32 s2, 256")
    a.branch(f"s_cbranch_scc1 {done_label}")
    a("s_load_dwordx4 s[4:7], s[0:1], 0")
    a("s_load_dwordx4 s[8:11], s[0:1], 16")
    a("s_load_dwordx4 s[12:15], s[0:1], 40")
    a("s_load_dwordx4 s[16:19], s[0:1], 56")
    a("s_load_dwordx4 s[20:23], s[0:1], 72")
    a(f"v_lshrrev_b32 v5, 6, v{V_TID}")
    a(f"v_and_b32 v{V_LANE}, 63, v{V_TID}")
    a(f"v_readfirstlane_b32 s{S_WAVE}, v5")
    a(f"v_lshlrev_b32 v{V_L16}, 4, v{V_LANE}")
    a(f"v_and_b32 v{V_J}, 15, v{V_LANE}")
    a(f"v_lshrrev_b32 v{V_G}, 4, v{V_LANE}")
    a.wait_lg(0)


SB_SRC, SB_STRIDE, SB_CPR, SB_MAGIC, SB_NCH, SB_TYPE, SB_P0, SB_P1, SB_S = 30, 32, 33, 34, 35, 36, 37, 38, 39
SA_SRC, SA_STRIDE, SA_CPR, SA_MAGIC, SA_NCH = 40, 42, 43, 44, 45
S_T0, S_T1, S_T2, S_T3, S_T4, S_T5 = 46, 47, 48, 49, 50, 51
S_DST, S_DSTR, S_IT = 52, 54, 55
S_EXT = 56


def decode_b(a):
    lw_o, l_d, l_done = a.newlabel("b_wo"), a.newlabel("b_wd"), a.newlabel("b_dec")
    a(f"s_min_u32 s{S_T0}, s2, 223")
    a(f"s_cmp_ge_u32 s{S_T0}, 160")
    a.branch(f"s_cbranch_scc1 {l_d}")
    a(f"s_cmp_ge_u32 s{S_T0}, 128")
    a.branch(f"s_cbranch_scc1 {lw_o}")
    a(f"s_lshr_b32 s{SB_S}, s{S_T0}, 6")
    a(f"s_lshr_b32 s{SB_P0}, s{S_T0}, 2")
    a(f"s_and_b32 s{SB_P0}, s{SB_P0}, 15")
    a(f"s_and_b32 s{SB_P1}, s{S_T0}, 3")
    a(f"s_cmp_eq_u32 s{SB_S}, 0")
    a(f"s_cselect_b32 s{S_T2}, s{S_WG}, s{S_WU}")
    a(f"s_cselect_b32 s{S_T3}, s{S_WG+1}, s{S_WU+1}")
    a(f"s_mul_i32 s{S_T1}, s{SB_P1}, {160*1536*2}")
    a(f"s_mul_i32 s{S_T4}, s{SB_P0}, {96*2}")
    a(f"s_add_u32 s{S_T1}, s{S_T1}, s{S_T4}")
    add64(a, SB_SRC, S_T2, f"s{S_T1}")
    a(f"s_mov_b32 s{SB_STRIDE}, 3072")
    a(f"s_mov_b32 s{SB_CPR}, 12")
    a(f"s_mov_b32 s{SB_MAGIC}, 5462")
    a(f"s_mov_b32 s{SB_NCH}, 1919")
    a(f"s_mov_b32 s{SB_TYPE}, 0")
    a.branch(f"s_branch {l_done}")
    a.label(lw_o)
    a(f"s_sub_u32 s{S_T0}, s{S_T0}, 128")
    a(f"s_lshr_b32 s{SB_P0}, s{S_T0}, 2")
    a(f"s_and_b32 s{SB_P1}, s{S_T0}, 3")
    a(f"s_mul_i32 s{S_T1}, s{SB_P1}, {160*640*2}")
    a(f"s_mul_i32 s{S_T4}, s{SB_P0}, 160")
    a(f"s_add_u32 s{S_T1}, s{S_T1}, s{S_T4}")
    add64(a, SB_SRC, S_WO, f"s{S_T1}")
    a(f"s_mov_b32 s{SB_STRIDE}, 1280")
    a(f"s_mov_b32 s{SB_CPR}, 10")
    a(f"s_mov_b32 s{SB_MAGIC}, 6554")
    a(f"s_mov_b32 s{SB_NCH}, 1599")
    a(f"s_mov_b32 s{SB_TYPE}, 1")
    a(f"s_mov_b32 s{SB_S}, 0")
    a.branch(f"s_branch {l_done}")
    a.label(l_d)
    a(f"s_sub_u32 s{S_T0}, s{S_T0}, 160")
    a(f"s_lshr_b32 s{SB_P0}, s{S_T0}, 3")
    a(f"s_and_b32 s{SB_P1}, s{S_T0}, 7")
    a(f"s_mul_i32 s{S_T1}, s{SB_P1}, {192*640*2}")
    a(f"s_mul_i32 s{S_T4}, s{SB_P0}, 160")
    a(f"s_add_u32 s{S_T1}, s{S_T1}, s{S_T4}")
    add64(a, SB_SRC, S_WD, f"s{S_T1}")
    a(f"s_mov_b32 s{SB_STRIDE}, 1280")
    a(f"s_mov_b32 s{SB_CPR}, 10")
    a(f"s_mov_b32 s{SB_MAGIC}, 6554")
    a(f"s_mov_b32 s{SB_NCH}, 1919")
    a(f"s_mov_b32 s{SB_TYPE}, 2")
    a(f"s_mov_b32 s{SB_S}, 0")
    a.label(l_done)


def stage_block(a, src, stride, cpr, magic, nch, lds_base):
    a(f"s_lshl_b32 s{S_T0}, s{S_WAVE}, 9")
    a(f"v_add_u32 v10, s{S_T0}, v{V_LANE}")
    a(f"s_lshl_b32 s{S_T1}, s{S_WAVE}, 13")
    a(f"s_add_u32 s{S_T1}, s{S_T1}, {lds_base}")
    for n in range(8):
        a(f"v_add_u32 v11, {64*n}, v10")
        a(f"v_min_u32 v11, s{nch}, v11")
        a(f"v_mul_u32_u24 v12, s{magic}, v11")
        a(f"v_lshrrev_b32 v12, 16, v12")
        a(f"v_mul_u32_u24 v13, s{cpr}, v12")
        a(f"v_sub_u32 v13, v11, v13")
        a(f"v_lshlrev_b32 v13, 4, v13")
        a(f"v_mad_u32_u24 v{14+n}, v12, s{stride}, v13")
        a(f"s_add_u32 m0, s{S_T1}, {1024*n}")
        a(f"global_load_lds_dwordx4 v{14+n}, {sp(src)}")


V_ONES = 24
V_ADDR, V_ADDR2, V_MASK, V_MASK2 = 28, 29, 30, 31
V_TMP = 32
V_FR = 80
V_CS = 108


def gather_tile(a, nks, offs, mask=None, cs=False):
    for ksl in range(nks):
        for e in range(8):
            av, imm = offs(ksl, e)
            op = "ds_read_u16_d16_hi" if e & 1 else "ds_read_u16"
            a(f"{op} v{V_TMP + 8*ksl + e}, v{av} offset:{imm}")
    for ksl in range(nks):
        for q in range(4):
            r = V_FR + 4 * ksl + q
            a(f"v_or_b32 v{r}, v{V_TMP + 8*ksl + 2*q}, v{V_TMP + 8*ksl + 2*q + 1}")
            if mask is not None:
                a(f"v_and_b32 v{r}, v{mask(q)}, v{r}")
    if cs:
        for ksl in range(nks):
            c = "0" if ksl == 0 else vr(V_CS)
            a(f"v_mfma_f32_16x16x32_bf16 {vr(V_CS)}, {vr(V_ONES)}, {vr(V_FR + 4*ksl)}, {c}")


def store_ext(a):
    a(f"v_cvt_pk_bf16_f32 v{V_TMP}, v{V_CS}, v{V_CS}")
    a(f"v_and_b32 v{V_TMP+4}, 0xffff0000, v{V_TMP}")
    a(f"v_sub_f32 v{V_TMP+4}, v{V_CS}, v{V_TMP+4}")
    a(f"v_mov_b32 v{V_TMP+2}, 0")
    a(f"v_mov_b32 v{V_TMP+3}, 0")
    a(f"v_cvt_pk_bf16_f32 v{V_TMP+1}, v{V_TMP+4}, v{V_TMP+2}")
    a("s_mov_b64 exec, 0xffff")
    a(f"global_store_dwordx4 v{V_L16}, {vr(V_TMP)}, {sp(S_EXT)} sc1")
    a("s_mov_b64 exec, -1")


def tile_loop(a, ntiles, body):
    top, end = a.newlabel("tile"), a.newlabel("tile_end")
    a(f"s_mov_b32 s{S_IT}, s{S_WAVE}")
    a.label(top, drained=False)
    body()
    a.drain()
    a(f"s_add_u32 s{S_IT}, s{S_IT}, 4")
    a(f"s_cmp_lt_u32 s{S_IT}, {ntiles}")
    a.branch(f"s_cbranch_scc1 {top}")


def half_head_lane(a):
    a(f"v_lshrrev_b32 v5, 2, v{V_J}")
    a(f"v_and_b32 v6, 3, v{V_J}")


def a_wqkv(a):
    ty, cc, kq = 60, 61, 62
    a(f"s_lshr_b32 s{ty}, s2, 5")
    a(f"s_lshr_b32 s{cc}, s2, 2")
    a(f"s_and_b32 s{cc}, s{cc}, 7")
    a(f"s_and_b32 s{kq}, s2, 3")
    a(f"s_mul_i32 s{S_T0}, s{kq}, {160*1920*2}")
    a(f"s_mul_i32 s{S_T1}, s{ty}, 1280")
    a(f"s_add_u32 s{S_T0}, s{S_T0}, s{S_T1}")
    a(f"s_mul_i32 s{S_T1}, s{cc}, 160")
    a(f"s_add_u32 s{S_T0}, s{S_T0}, s{S_T1}")
    add64(a, SA_SRC, S_WQKV, f"s{S_T0}")
    a(f"s_mov_b32 s{SA_STRIDE}, 3840")
    a(f"s_mov_b32 s{SA_CPR}, 10")
    a(f"s_mov_b32 s{SA_MAGIC}, 6554")
    a(f"s_mov_b32 s{SA_NCH}, 1599")
    stage_block(a, SA_SRC, SA_STRIDE, SA_CPR, SA_MAGIC, SA_NCH, LDS_A)
    tok = a.vm_token()
    stage_block(a, SB_SRC, SB_STRIDE, SB_CPR, SB_MAGIC, SB_NCH, LDS_B)
    for q in range(4):
        a(f"v_mov_b32 v{V_ONES+q}, 0x3f803f80")
    a.wait_token(tok)
    a.barrier()

    def body():
        cl, t = 63, 64
        a(f"s_cmp_ge_u32 s{S_IT}, 3")
        a(f"s_cselect_b32 s{cl}, 1, 0")
        a(f"s_mul_i32 s{t}, s{cl}, 3")
        a(f"s_sub_u32 s{t}, s{S_IT}, s{t}")
        half_head_lane(a)
        a("v_lshrrev_b32 v7, 1, v5")
        a("v_mul_u32_u24 v7, 20, v7")
        a("v_and_b32 v8, 1, v5")
        a("v_mul_u32_u24 v8, 10, v8")
        a("v_add3_u32 v7, v7, v8, v6")
        a(f"s_mul_i32 s{S_T0}, s{cl}, 40")
        a(f"s_lshl_b32 s{S_T1}, s{t}, 2")
        a(f"s_add_u32 s{S_T0}, s{S_T0}, s{S_T1}")
        a(f"v_add_u32 v7, s{S_T0}, v7")
        a("v_lshlrev_b32 v7, 1, v7")
        a(f"v_mul_u32_u24 v8, {8*160}, v{V_G}")
        a(f"v_add_u32 v{V_ADDR}, v7, v8")
        a(f"v_add_u32 v9, s{S_T1}, v6")
        a("v_cmp_gt_u32 vcc, 10, v9")
        a(f"v_cndmask_b32 v{V_MASK}, 0, -1, vcc")
        gather_tile(a, 5, lambda ksl, e: (V_ADDR, LDS_A + (32*ksl + e) * 160), mask=lambda q: V_MASK, cs=True)
        c = 65
        a(f"s_lshl_b32 s{c}, s{cc}, 1")
        a(f"s_add_u32 s{c}, s{c}, s{cl}")
        a(f"s_cmp_eq_u32 s{ty}, 0")
        a(f"s_cselect_b32 s{S_DSTR}, 3, 6")
        a(f"s_mov_b32 s{S_T2}, {WS.WQKV1}")
        a(f"s_cselect_b32 s{S_T2}, {WS.WQKV2}, s{S_T2}")
        a(f"s_lshl_b32 s{S_DSTR}, s{S_DSTR}, 10")
        a(f"s_mul_i32 s{S_T3}, s{c}, {NKS}")
        a(f"s_mul_i32 s{S_T3}, s{S_T3}, s{S_DSTR}")
        a(f"s_add_u32 s{S_T2}, s{S_T2}, s{S_T3}")
        a(f"s_cmp_eq_u32 s{ty}, 2")
        a(f"s_cselect_b32 s{S_T3}, 3, 0")
        a(f"s_add_u32 s{S_T3}, s{S_T3}, s{t}")
        a(f"s_lshl_b32 s{S_T3}, s{S_T3}, 10")
        a(f"s_add_u32 s{S_T2}, s{S_T2}, s{S_T3}")
        a(f"s_mul_i32 s{S_T3}, s{S_DSTR}, 20")
        a(f"s_add_u32 s{S_T3}, s{S_T3}, s{S_T2}")
        a(f"s_lshl_b32 s{S_T4}, s{kq}, 8")
        a(f"s_add_u32 s{S_T3}, s{S_T3}, s{S_T4}")
        add64(a, S_EXT, S_WS, f"s{S_T3}")
        a(f"s_mul_i32 s{S_T3}, s{kq}, 5")
        a(f"s_mul_i32 s{S_T3}, s{S_T3}, s{S_DSTR}")
        a(f"s_add_u32 s{S_T2}, s{S_T2}, s{S_T3}")
        add64(a, S_DST, S_WS, f"s{S_T2}")
        for ksl in range(5):
            a(f"global_store_dwordx4 v{V_L16}, {vr(V_FR + 4*ksl)}, {sp(S_DST)} sc1")
            if ksl < 4:
                add64(a, S_DST, S_DST, f"s{S_DSTR}")
        store_ext(a)
    tile_loop(a, 6, body)


def a_x0(a):
    tt = 60
    a(f"s_sub_u32 s{tt}, s2, 96")
    a(f"s_mul_i32 s{S_T0}, s{tt}, {16*1280}")
    a(f"s_mul_i32 s{S_T1}, s{S_WAVE}, {5*64}")
    a(f"s_add_u32 s{S_T0}, s{S_T0}, s{S_T1}")
    add64(a, SA_SRC, S_X, f"s{S_T0}")
    a(f"v_mul_u32_u24 v5, 1280, v{V_J}")
    a(f"v_lshlrev_b32 v6, 4, v{V_G}")
    a("v_add_u32 v5, v5, v6")
    for n in range(5):
        a(f"global_load_dwordx4 {vr(V_FR + 4*n)}, v5, {sp(SA_SRC)} offset:{64*n}")
    tok = a.vm_token()
    stage_block(a, SB_SRC, SB_STRIDE, SB_CPR, SB_MAGIC, SB_NCH, LDS_B)
    a(f"s_mul_i32 s{S_T0}, s{tt}, {20*KB}")
    a(f"s_mul_i32 s{S_T1}, s{S_WAVE}, {5*KB}")
    a(f"s_add_u32 s{S_T0}, s{S_T0}, s{S_T1}")
    a(f"s_add_u32 s{S_T0}, s{S_T0}, {WS.XF0}")
    add64(a, S_DST, S_WS, f"s{S_T0}")
    a.wait_token(tok)
    for n in range(5):
        if n == 4:
            add64(a, S_DST, S_DST, 4096)
        a(f"global_store_dwordx4 v{V_L16}, {vr(V_FR + 4*n)}, {sp(S_DST)} offset:{(n % 4)*1024} sc1")
    s_, ss = 40, 41
    a(f"v_mov_b32 v{s_}, 0")
    a(f"v_mov_b32 v{ss}, 0")
    for n in range(20):
        r = V_FR + n
        a(f"v_lshlrev_b32 v42, 16, v{r}")
        a(f"v_and_b32 v43, 0xffff0000, v{r}")
        a(f"v_add_f32 v{s_}, v{s_}, v42")
        a(f"v_fmac_f32 v{ss}, v42, v42")
        a(f"v_add_f32 v{s_}, v{s_}, v43")
        a(f"v_fmac_f32 v{ss}, v43, v43")
    reduce_groups(a, [s_, ss], 44)
    a(f"s_lshl_b32 s{S_T0}, s{tt}, 10")
    a(f"s_add_u32 s{S_T0}, s{S_T0}, {WS.ST0}")
    add64(a, S_DST, S_WS, f"s{S_T0}")
    a(f"s_lshr_b32 s{S_T1}, s{S_WAVE}, 1")
    a(f"s_lshl_b32 s{S_T1}, s{S_T1}, 8")
    a(f"s_and_b32 s{S_T2}, s{S_WAVE}, 1")
    a(f"s_lshl_b32 s{S_T2}, s{S_T2}, 3")
    a(f"s_add_u32 s{S_T1}, s{S_T1}, s{S_T2}")
    a(f"v_add_u32 v46, s{S_T1}, v{V_L16}")
    a("s_mov_b64 exec, 0xffff")
    a(f"global_store_dwordx2 v46, v[{s_}:{ss}], {sp(S_DST)} sc1")
    a("s_mov_b64 exec, -1")
    a("v_mov_b32 v48, 0")
    a("v_mov_b32 v49, 0")
    a(f"s_lshl_b32 s{S_T1}, s{S_WAVE}, 7")
    a(f"v_lshlrev_b32 v47, 3, v{V_LANE}")
    a(f"v_add_u32 v47, s{S_T1}, v47")
    a("s_mov_b64 exec, 0xffff")
    a(f"global_store_dwordx2 v47, v[48:49], {sp(S_DST)} offset:512 sc1")
    a("s_mov_b64 exec, -1")
    a.drain()


def reduce_groups(a, regs, tmp):
    for i, r in enumerate(regs):
        a(f"v_mov_b32 v{tmp+i}, v{r}")
    for i, r in enumerate(regs):
        a(f"v_permlane16_swap_b32 v{r}, v{tmp+i}")
    for i, r in enumerate(regs):
        a(f"v_add_f32 v{r}, v{r}, v{tmp+i}")
    for i, r in enumerate(regs):
        a(f"v_mov_b32 v{tmp+i}, v{r}")
    for i, r in enumerate(regs):
        a(f"v_permlane32_swap_b32 v{r}, v{tmp+i}")
    for i, r in enumerate(regs):
        a(f"v_add_f32 v{r}, v{r}, v{tmp+i}")


def a_wphi(a):
    c = 60
    a(f"s_sub_u32 s{c}, s2, 224")
    a(f"s_mul_i32 s{S_T0}, s{c}, 1600")
    add64(a, SA_SRC, S_WPHI, f"s{S_T0}")
    a(f"s_mov_b32 s{SA_STRIDE}, 0")
    a(f"s_mov_b32 s{SA_CPR}, 128")
    a(f"s_mov_b32 s{SA_MAGIC}, 0")
    a(f"s_mov_b32 s{SA_NCH}, 99")
    stage_block(a, SA_SRC, SA_STRIDE, SA_CPR, SA_MAGIC, SA_NCH, LDS_A)
    tok = a.vm_token()
    stage_block(a, SB_SRC, SB_STRIDE, SB_CPR, SB_MAGIC, SB_NCH, LDS_B)
    a.wait_token(tok)
    a.barrier()

    def body():
        kap, t = 63, 64
        a(f"s_cmp_ge_u32 s{S_IT}, 3")
        a(f"s_cselect_b32 s{kap}, 1, 0")
        a(f"s_mul_i32 s{t}, s{kap}, 3")
        a(f"s_sub_u32 s{t}, s{S_IT}, s{t}")
        half_head_lane(a)
        a("v_and_b32 v7, 1, v5")
        a("v_mul_u32_u24 v7, 10, v7")
        a(f"s_lshl_b32 s{S_T1}, s{t}, 2")
        a(f"v_add_u32 v9, s{S_T1}, v6")
        a("v_add_u32 v7, v7, v9")
        a(f"v_and_b32 v8, 1, v{V_G}")
        a("v_mul_u32_u24 v8, 200, v8")
        a(f"s_mul_i32 s{S_T2}, s{kap}, 160")
        a(f"v_add_u32 v8, s{S_T2}, v8")
        a(f"v_lshrrev_b32 v10, 1, v{V_G}")
        a("v_mul_u32_u24 v11, 400, v10")
        a("v_add3_u32 v7, v7, v8, v11")
        a(f"v_lshlrev_b32 v{V_ADDR}, 1, v7")
        a("v_lshrrev_b32 v5, 1, v5")
        a("v_cmp_eq_u32 vcc, v5, v10")
        a(f"v_cndmask_b32 v{V_MASK}, 0, -1, vcc")
        a("v_cmp_gt_u32 vcc, 10, v9")
        a(f"v_cndmask_b32 v{V_MASK}, 0, v{V_MASK}, vcc")
        a(f"s_cmp_eq_u32 s{kap}, 0")
        a(f"s_cselect_b32 s{S_T3}, -1, 0")
        a(f"v_and_b32 v{V_MASK2}, s{S_T3}, v{V_MASK}")
        gather_tile(a, 1, lambda ksl, e: (V_ADDR, LDS_A + 40 * e), mask=lambda q: V_MASK if q == 0 else V_MASK2)
        a(f"s_mul_i32 s{S_T2}, s{c}, 6")
        a(f"s_add_u32 s{S_T2}, s{S_T2}, s{S_IT}")
        a(f"s_lshl_b32 s{S_T2}, s{S_T2}, 10")
        a(f"s_add_u32 s{S_T2}, s{S_T2}, {WS.WPHI}")
        add64(a, S_DST, S_WS, f"s{S_T2}")
        a(f"global_store_dwordx4 v{V_L16}, {vr(V_FR)}, {sp(S_DST)} sc1")
    tile_loop(a, 6, body)


def a_misc(a):
    skip = a.newlabel("zero_skip")
    stage_block(a, SB_SRC, SB_STRIDE, SB_CPR, SB_MAGIC, SB_NCH, LDS_B)
    a.wait_vm(0)
    a("s_cmp_lg_u32 s2, 240")
    a.branch(f"s_cbranch_scc1 {skip}")
    add64(a, S_DST, S_WS, WS.FLAGS)
    for q in range(4):
        a(f"v_mov_b32 v{40+q}, 0")
    a(f"v_lshlrev_b32 v5, 4, v{V_TID}")
    for n in range(WS.FLAGS_ZERO // 4096):
        a(f"global_store_dwordx4 v5, v[40:43], {sp(S_DST)} sc1")
        a("v_add_u32 v5, 4096, v5")
    a.drain()
    a.label(skip)


def out_tile_col(a, ct_s, t_s):
    half_head_lane(a)
    a(f"s_and_b32 s{S_T0}, s{ct_s}, 1")
    a(f"s_lshl_b32 s{S_T1}, s{S_T0}, 4")
    a(f"s_lshr_b32 s{S_T2}, s{t_s}, 1")
    a(f"s_lshl_b32 s{S_T2}, s{S_T2}, 5")
    a(f"s_add_u32 s{S_T1}, s{S_T1}, s{S_T2}")
    a(f"s_and_b32 s{S_T2}, s{t_s}, 1")
    a(f"s_lshl_b32 s{S_T2}, s{S_T2}, 2")
    a(f"s_add_u32 s{S_T1}, s{S_T1}, s{S_T2}")
    a("v_lshlrev_b32 v7, 3, v5")
    a("v_add3_u32 v7, v7, v6, s%d" % S_T1)
    a(f"s_cmp_eq_u32 s{S_T0}, 0")
    a(f"s_cselect_b32 s{S_T2}, 64, 0")
    a(f"v_add_u32 v8, s{S_T2}, v{V_J}")
    a(f"s_cmp_eq_u32 s{t_s}, 4")
    a("s_cselect_b64 vcc, -1, 0")
    a("v_cndmask_b32 v7, v7, v8, vcc")


def b_wgu(a):
    def body():
        half_head_lane(a)
        a(f"s_lshr_b32 s{S_T0}, s{S_IT}, 1")
        a(f"s_lshl_b32 s{S_T1}, s{S_T0}, 5")
        a(f"s_and_b32 s{S_T2}, s{S_IT}, 1")
        a(f"s_lshl_b32 s{S_T3}, s{S_T2}, 2")
        a(f"s_add_u32 s{S_T1}, s{S_T1}, s{S_T3}")
        a("v_lshlrev_b32 v7, 3, v5")
        a("v_add3_u32 v7, v7, v6, s%d" % S_T1)
        a("v_lshlrev_b32 v7, 1, v7")
        a(f"v_mul_u32_u24 v8, {8*192}, v{V_G}")
        a(f"v_add_u32 v{V_ADDR}, v7, v8")
        gather_tile(a, 5, lambda ksl, e: (V_ADDR, LDS_B + (32*ksl + e) * 192), cs=True)
        a(f"s_mul_i32 s{S_T3}, s{SB_P0}, 3")
        a(f"s_add_u32 s{S_T3}, s{S_T3}, s{S_T0}")
        a(f"s_mul_i32 s{S_T3}, s{S_T3}, {NKS*4*KB}")
        a(f"s_lshl_b32 s{S_T2}, s{S_T2}, 1")
        a(f"s_add_u32 s{S_T2}, s{S_T2}, s{SB_S}")
        a(f"s_lshl_b32 s{S_T2}, s{S_T2}, 10")
        a(f"s_add_u32 s{S_T3}, s{S_T3}, s{S_T2}")
        a(f"s_add_u32 s{S_T3}, s{S_T3}, {WS.WGU}")
        a(f"s_lshl_b32 s{S_T4}, s{SB_P1}, 8")
        a(f"s_add_u32 s{S_T4}, s{S_T4}, s{S_T3}")
        a(f"s_add_u32 s{S_T4}, s{S_T4}, {20*4*KB}")
        add64(a, S_EXT, S_WS, f"s{S_T4}")
        a(f"s_mul_i32 s{S_T4}, s{SB_P1}, {5*4*KB}")
        a(f"s_add_u32 s{S_T3}, s{S_T3}, s{S_T4}")
        add64(a, S_DST, S_WS, f"s{S_T3}")
        for ksl in range(5):
            a(f"global_store_dwordx4 v{V_L16}, {vr(V_FR + 4*ksl)}, {sp(S_DST)} sc1")
            if ksl < 4:
                add64(a, S_DST, S_DST, 4 * KB)
        store_ext(a)
    for q in range(4):
        a(f"v_mov_b32 v{V_ONES+q}, 0x3f803f80")
    tile_loop(a, 6, body)


def b_wo(a):
    def body():
        out_tile_col(a, SB_P0, S_IT)
        a("v_lshlrev_b32 v7, 1, v7")
        a(f"v_lshrrev_b32 v8, 1, v{V_G}")
        a("v_mul_u32_u24 v8, 10, v8")
        a(f"v_and_b32 v9, 1, v{V_G}")
        a("v_lshlrev_b32 v10, 2, v9")
        a("v_add_u32 v10, v10, v8")
        a("v_add3_u32 v11, v8, v9, 8")
        a("v_mul_u32_u24 v10, 160, v10")
        a("v_mul_u32_u24 v11, 160, v11")
        a(f"v_add_u32 v{V_ADDR}, v7, v10")
        a(f"v_add_u32 v{V_ADDR2}, v7, v11")

        def offs(ksl, e):
            if ksl < 4:
                row, m = 40 * ksl + 20 * (e >= 5), e % 5
            else:
                row, m = 40 * (e >> 1) + 20, 3 + (e & 1)
            if m < 4:
                return V_ADDR, LDS_B + (row + m) * 160
            return V_ADDR2, LDS_B + row * 160
        gather_tile(a, 5, offs)
        a(f"s_mul_i32 s{S_T3}, s{SB_P0}, {20*5*KB}")
        a(f"s_lshl_b32 s{S_T2}, s{S_IT}, 10")
        a(f"s_add_u32 s{S_T3}, s{S_T3}, s{S_T2}")
        a(f"s_add_u32 s{S_T3}, s{S_T3}, {WS.WO}")
        a(f"s_mul_i32 s{S_T4}, s{SB_P1}, {4*5*KB}")
        a(f"s_add_u32 s{S_T4}, s{S_T4}, s{S_T3}")
        add64(a, S_DST, S_WS, f"s{S_T4}")
        for ksl in range(4):
            a(f"global_store_dwordx4 v{V_L16}, {vr(V_FR + 4*ksl)}, {sp(S_DST)} sc1")
            if ksl < 3:
                add64(a, S_DST, S_DST, 5 * KB)
        a(f"s_add_u32 s{S_T4}, s{SB_P1}, 16")
        a(f"s_mul_i32 s{S_T4}, s{S_T4}, {5*KB}")
        a(f"s_add_u32 s{S_T4}, s{S_T4}, s{S_T3}")
        add64(a, S_DST, S_WS, f"s{S_T4}")
        a(f"global_store_dwordx4 v{V_L16}, {vr(V_FR + 16)}, {sp(S_DST)} sc1")
    tile_loop(a, 5, body)


def b_wd(a):
    def body():
        out_tile_col(a, SB_P0, S_IT)
        a("v_lshlrev_b32 v7, 1, v7")
        a(f"v_mul_u32_u24 v8, {8*160}, v{V_G}")
        a(f"v_add_u32 v{V_ADDR}, v7, v8")
        gather_tile(a, 6, lambda ksl, e: (V_ADDR, LDS_B + (32*ksl + e) * 160))
        a(f"s_mul_i32 s{S_T3}, s{SB_P0}, {48*5*KB}")
        a(f"s_lshl_b32 s{S_T2}, s{S_IT}, 10")
        a(f"s_add_u32 s{S_T3}, s{S_T3}, s{S_T2}")
        a(f"s_mul_i32 s{S_T4}, s{SB_P1}, {6*5*KB}")
        a(f"s_add_u32 s{S_T3}, s{S_T3}, s{S_T4}")
        a(f"s_add_u32 s{S_T3}, s{S_T3}, {WS.WD}")
        add64(a, S_DST, S_WS, f"s{S_T3}")
        for ksl in range(6):
            a(f"global_store_dwordx4 v{V_L16}, {vr(V_FR + 4*ksl)}, {sp(S_DST)} sc1")
            if ksl < 5:
                add64(a, S_DST, S_DST, 5 * KB)
    tile_loop(a, 5, body)


def signal_a(a):
    a.drain()
    a.barrier()
    skip = a.newlabel("siga")
    a(f"s_cmp_lg_u32 s{S_WAVE}, 0")
    a.branch(f"s_cbranch_scc1 {skip}")
    a(f"s_getreg_b32 s{S_T0}, hwreg(HW_REG_XCC_ID, 0, 4)")
    a(f"s_add_u32 s{S_T0}, s{S_T0}, 1")
    a(f"v_mov_b32 v5, s{S_T0}")
    a("v_mov_b32 v6, s2")
    a("s_mov_b64 exec, 1")
    a(f"global_store_byte v6, v5, {sp(S_DBG)} sc1")
    a("s_mov_b64 exec, -1")
    a.drain()
    a.label(skip)


SPIN_MAX = 4000000


def wait_all_and_place(a, force_slow=False):
    skip, top, bail = a.newlabel("w1skip"), a.newlabel("w1poll"), a.newlabel("w1bail")
    a(f"s_cmp_lg_u32 s{S_WAVE}, 0")
    a.branch(f"s_cbranch_scc1 {skip}")
    a(f"v_lshlrev_b32 v5, 2, v{V_LANE}")
    a(f"s_mov_b32 s{S_T0}, 0")
    a(f"s_mov_b32 s{S_T1}, 0x01010101")
    a(f"s_mov_b32 s{S_T2}, 0x80808080")
    a.label(top)
    a(f"global_load_dword v6, v5, {sp(S_DBG)} sc1")
    a(f"v_subrev_u32 v7, s{S_T1}, v6")
    a("v_not_b32 v8, v6")
    a("v_and_b32 v7, v7, v8")
    a(f"v_and_b32 v7, s{S_T2}, v7")
    a("v_cmp_ne_u32 vcc, 0, v7")
    a(f"s_add_u32 s{S_T0}, s{S_T0}, 1")
    a(f"s_cmp_gt_u32 s{S_T0}, {SPIN_MAX}")
    a.branch(f"s_cbranch_scc1 {bail}")
    a.branch(f"s_cbranch_vccnz {top}")
    a.label(bail)
    a.label(skip)
    a.barrier()
    a(f"v_lshlrev_b32 v5, 2, v{V_LANE}")
    a(f"global_load_dword v6, v5, {sp(S_DBG)} sc1")
    a(f"s_getreg_b32 s{S_T0}, hwreg(HW_REG_XCC_ID, 0, 4)")
    a(f"s_add_u32 s{S_T0}, s{S_T0}, 1")
    for q in range(4):
        a(f"v_bfe_u32 v{8+q}, v6, {8*q}, 8")
        a(f"v_add_u32 v{12+q}, {q}, v5")
    a(f"s_mov_b32 s{S_T1}, 0")
    for q in range(4):
        a(f"v_cmp_eq_u32 s[60:61], s{S_T0}, v{8+q}")
        a(f"v_cmp_gt_u32 vcc, s2, v{12+q}")
        a("s_and_b64 s[60:61], s[60:61], vcc")
        a(f"s_bcnt1_i32_b64 s{S_T2}, s[60:61]")
        a(f"s_add_u32 s{S_T1}, s{S_T1}, s{S_T2}")
    a(f"s_mov_b32 s{S_SLOW}, {1 if force_slow else 0}")
    for x in range(1, 9):
        a(f"s_mov_b32 s{S_T3}, 0")
        for q in range(4):
            a(f"v_cmp_eq_u32 vcc, {x}, v{8+q}")
            a(f"s_bcnt1_i32_b64 s{S_T2}, vcc")
            a(f"s_add_u32 s{S_T3}, s{S_T3}, s{S_T2}")
        a(f"s_cmp_lg_u32 s{S_T3}, 32")
        a(f"s_cselect_b32 s{S_T2}, 1, 0")
        a(f"s_or_b32 s{S_SLOW}, s{S_SLOW}, s{S_T2}")
    a(f"s_sub_u32 s{S_T0}, s{S_T0}, 1")
    a(f"s_lshl_b32 s{S_T0}, s{S_T0}, 5")
    a(f"s_add_u32 s{S_T0}, s{S_T0}, s{S_T1}")
    a(f"s_cmp_eq_u32 s{S_SLOW}, 0")
    a(f"s_cselect_b32 s{S_T0}, s{S_T0}, s2")
    a(f"s_lshr_b32 s{S_RB}, s{S_T0}, 4")
    a(f"s_and_b32 s{S_MEM}, s{S_T0}, 15")


def prep(a, force_slow=False):
    l_x0, l_phi, l_misc, l_join = [a.newlabel(n) for n in ("a_x0", "a_phi", "a_misc", "a_join")]
    decode_b(a)
    a("s_cmp_ge_u32 s2, 240")
    a.branch(f"s_cbranch_scc1 {l_misc}")
    a("s_cmp_ge_u32 s2, 224")
    a.branch(f"s_cbranch_scc1 {l_phi}")
    a("s_cmp_ge_u32 s2, 96")
    a.branch(f"s_cbranch_scc1 {l_x0}")
    a_wqkv(a)
    a.branch(f"s_branch {l_join}")
    a.label(l_x0)
    a_x0(a)
    a.branch(f"s_branch {l_join}")
    a.label(l_phi)
    a_wphi(a)
    a.branch(f"s_branch {l_join}")
    a.label(l_misc)
    a_misc(a)
    a.label(l_join)
    signal_a(a)
    l_bo, l_bd, l_bend = [a.newlabel(n) for n in ("b_o", "b_d", "b_end")]
    a("s_cmp_ge_u32 s2, 224")
    a.branch(f"s_cbranch_scc1 {l_bend}")
    a(f"s_cmp_eq_u32 s{SB_TYPE}, 2")
    a.branch(f"s_cbranch_scc1 {l_bd}")
    a(f"s_cmp_eq_u32 s{SB_TYPE}, 1")
    a.branch(f"s_cbranch_scc1 {l_bo}")
    b_wgu(a)
    a.branch(f"s_branch {l_bend}")
    a.label(l_bo)
    b_wo(a)
    a.branch(f"s_branch {l_bend}")
    a.label(l_bd)
    b_wd(a)
    a.label(l_bend)
    wait_all_and_place(a, force_slow)
    a.drain()
    a.barrier()
    skip = a.newlabel("sigb")
    a(f"s_cmp_lg_u32 s{S_WAVE}, 0")
    a.branch(f"s_cbranch_scc1 {skip}")
    a(f"s_lshl_b32 s{S_T0}, s2, 2")
    a(f"v_mov_b32 v6, s{S_T0}")
    a("v_mov_b32 v5, 1")
    add64(a, S_DST, S_WS, WS.PBFLAG)
    a("s_mov_b64 exec, 1")
    a(f"global_store_dword v6, v5, {sp(S_DST)} sc1")
    a("s_mov_b64 exec, -1")
    a.drain()
    a.label(skip)
```

```python
import numpy as np

T, D, H, DH, F = 2048, 640, 32, 20, 1536
KB = 1024
NKS = 21


def _al(x, a=4096):
    return (x + a - 1) // a * a


class WS:
    pass


_off = 0


def _alloc(name, size):
    global _off
    setattr(WS, name, _off)
    setattr(WS, name + "_SZ", size)
    _off = _al(_off + size)


_alloc("FLAGS", 32 * KB)
WS.GRPFLAG = WS.FLAGS
WS.KVFLAG = WS.FLAGS + 8192
WS.AFLAG = WS.FLAGS + 16384
WS.PBFLAG = WS.FLAGS + 20480
WS.FLAGS_ZERO = 24 * KB
_alloc("WQKV1", (16 * NKS * 6 + 4) * KB)
_alloc("WQKV2", (16 * NKS * 3 + 4) * KB)
_alloc("WPHI", 16 * 6 * KB)
_alloc("WO", 8 * 20 * 5 * KB)
_alloc("WGU", 16 * 3 * NKS * 4 * KB)
_alloc("WD", 8 * 48 * 5 * KB)
_alloc("XF0", 128 * 20 * KB)
_alloc("ST0", 128 * KB)
_alloc("KVP", 2 * 16 * 16 * 4096)
_alloc("O", 2 * 128 * 20 * KB)
_alloc("X1", 2 * 128 * 20 * KB)
_alloc("ST1", 2 * 128 * KB)
_alloc("HH", 2 * 128 * 48 * KB)
_alloc("X2", 128 * 20 * KB)
_alloc("ST2", 128 * KB)
_alloc("DBG", 1024 * KB)
WS.X1 = WS.X2 = WS.XF0
WS.ST1 = WS.ST2 = WS.ST0
WS.TOTAL = _off

lane = np.arange(64)
LI = lane & 15
LG = lane >> 4
E = np.arange(8)


def frag(mat_kn, kidx, nidx, valid=None):
    out = mat_kn[kidx, nidx[:, None]].copy()
    if valid is not None:
        out[~valid] = 0
    return out


def k_nat(ks):
    return 32 * ks + 8 * LG[:, None] + E[None, :]


def half_head_cols(c, t):
    g, r = LI >> 2, LI & 3
    col = (2 * c + (g >> 1)) * 20 + 10 * (g & 1) + 4 * t + r
    valid = (4 * t + r) < 10
    return np.where(valid, col, 0), valid


def out_cols(ct, t):
    g, r = LI >> 2, LI & 3
    if t < 4:
        return 80 * ct + 16 * (ct & 1) + 32 * (t >> 1) + 8 * g + 4 * (t & 1) + r
    return 80 * ct + (0 if ct & 1 else 64) + LI


def d_of(g, m):
    return np.where(m < 4, 10 * (g >> 1) + 4 * (g & 1) + m, 10 * (g >> 1) + 8 + (g & 1))


def o_kidx(ks):
    g = LG[:, None]
    e = E[None, :]
    if ks < 16:
        head = 2 * ks + (e >= 5)
        m = e % 5
        return head * 20 + d_of(g, m)
    u = ks - 16
    c = 4 * u + (e >> 1)
    m = 3 + (e & 1)
    return (2 * c + 1) * 20 + d_of(g, m + 0 * g)


def gu_cols(m, p):
    g, r = LI >> 2, LI & 3
    return 96 * m + 32 * (p >> 1) + 8 * g + 4 * (p & 1) + r


def x_frags(x):
    Tn, K = x.shape
    return x.reshape(Tn // 16, 16, K // 32, 4, 8).transpose(0, 2, 3, 1, 4).reshape(Tn // 16, K // 32, 64, 8)


def x_unfrags(f):
    tt, ks = f.shape[:2]
    return f.reshape(tt, ks, 4, 16, 8).transpose(0, 3, 1, 2, 4).reshape(tt * 16, ks * 32)


if __name__ == "__main__":
    for k, v in sorted(vars(WS).items(), key=lambda kv: kv[1] if isinstance(kv[1], int) else 0):
        if isinstance(v, int) and not k.endswith("_SZ"):
            print(k, hex(v), v)
```

```python
import sys, argparse
from asmgen import Asm
from layout import WS
import gen_prep as P

KNAME = "interleave_layers__linear_kernel_hedgehog__geglu_ffn__prompt_kernel"
HEADER = open("interleave_layers__linear_kernel_hedgehog__geglu_ffn__prompt.s.ref").read().split("; Override launch")[0]

def build(stop=None, force_slow=False, stamps=False):
    a = Asm()
    done = "L_done"
    P.prologue(a, done)
    P.prep(a, force_slow)
    if stop != "prep":
        import gen_main as M
        M.main(a, stop=stop, stamps=stamps)
    a.drain()
    a.label(done)
    a.I("s_endpgm")
    body = a.text()
    s = HEADER
    s += "; @launch grid=(256,1,1) block=(256,1,1) lds=163840\n"
    s += '.amdgcn_target "amdgcn-amd-amdhsa--gfx950"\n.text\n'
    s += f".globl {KNAME}\n.p2align 8\n.type {KNAME},@function\n{KNAME}:\n"
    s += body
    s += f""".section .rodata,"a"
.p2align 6
.amdhsa_kernel {KNAME}
  .amdhsa_next_free_vgpr 512
  .amdhsa_next_free_sgpr 102
  .amdhsa_accum_offset 256
  .amdhsa_group_segment_fixed_size 0
  .amdhsa_kernarg_size 88
  .amdhsa_user_sgpr_count 2
  .amdhsa_user_sgpr_kernarg_segment_ptr 1
  .amdhsa_system_sgpr_workgroup_id_x 1
.end_amdhsa_kernel
"""
    return s, a

if __name__ == "__main__":
    ap = argparse.ArgumentParser()
    ap.add_argument("-o", default="k.s")
    ap.add_argument("--stop", default=None)
    ap.add_argument("--slow", action="store_true")
    ap.add_argument("--stamps", action="store_true")
    args = ap.parse_args()
    s, a = build(args.stop, args.slow, args.stamps)
    open(args.o, "w").write(s)
    print("instructions:", a.ninstr, a.stats)
```

```python
import re

TRANS = ("v_exp_f32", "v_log_f32", "v_rcp_f32", "v_rsq_f32", "v_sqrt_f32", "v_sin_f32", "v_cos_f32",
         "v_rcp_iflag_f32")
REG_RE = re.compile(r"^-?\|?(abs\()?([vas])(\d+)\)?\|?$")
RANGE_RE = re.compile(r"^-?([vas])\[(\d+):(\d+)\]$")


def regs_of(op):
    op = op.strip()
    m = REG_RE.match(op)
    if m:
        return [m.group(2) + m.group(3)]
    m = RANGE_RE.match(op)
    if m:
        return [m.group(1) + str(i) for i in range(int(m.group(2)), int(m.group(3)) + 1)]
    if op in ("vcc", "exec", "m0", "scc"):
        return [op]
    if op in ("vcc_lo", "vcc_hi"):
        return ["vcc"]
    if op in ("exec_lo", "exec_hi"):
        return ["exec"]
    return []


def split_ops(s):
    out, depth, cur = [], 0, ""
    for ch in s:
        if ch in "[(":
            depth += 1
        if ch in "])":
            depth -= 1
        if ch == "," and depth == 0:
            out.append(cur.strip())
            cur = ""
        else:
            cur += ch
    if cur.strip():
        out.append(cur.strip())
    mods = ""
    if out:
        last = out[-1]
        depth = 0
        for i, ch in enumerate(last):
            if ch in "[(":
                depth += 1
            if ch in "])":
                depth -= 1
            if ch == " " and depth == 0:
                mods = last[i + 1:]
                out[-1] = last[:i]
                break
    return out, mods


class Ins:
    __slots__ = ("text", "mn", "ops", "mods", "cls", "reads", "writes", "trans")

    def __init__(self, text):
        self.text = text
        t = text.strip()
        parts = t.split(None, 1)
        mn = parts[0]
        self.mn = mn
        self.ops, self.mods = split_ops(parts[1]) if len(parts) > 1 else ([], "")
        base = re.sub(r"_(e32|e64|dpp|sdwa)$", "", mn)
        self.trans = base in TRANS
        ops = self.ops
        R, W = [], []
        if mn.startswith("v_mfma"):
            c = "mfma"
            W = regs_of(ops[0])
            for o in ops[1:]:
                R += regs_of(o)
        elif mn.startswith("v_"):
            c = "valu"
            if base.startswith("v_cmpx"):
                W = regs_of(ops[0]) + ["exec"]
                for o in ops[1:]:
                    R += regs_of(o)
            elif base.startswith("v_cmp"):
                W = regs_of(ops[0])
                for o in ops[1:]:
                    R += regs_of(o)
            elif base in ("v_add_co_u32", "v_sub_co_u32", "v_addc_co_u32", "v_subb_co_u32", "v_subrev_co_u32"):
                W = regs_of(ops[0]) + regs_of(ops[1])
                for o in ops[2:]:
                    R += regs_of(o)
            elif base.startswith("v_permlane") and "swap" in base:
                W = regs_of(ops[0]) + regs_of(ops[1])
                R = list(W)
            elif base in ("v_fmac_f32", "v_pk_fmac_f16", "v_dot2c_f32_bf16", "v_writelane_b32"):
                W = regs_of(ops[0])
                R = list(W)
                for o in ops[1:]:
                    R += regs_of(o)
            elif base == "v_nop":
                pass
            else:
                W = regs_of(ops[0])
                for o in ops[1:]:
                    R += regs_of(o)
            if "dpp" in mn or "row_" in self.mods or "quad_perm" in self.mods:
                R += W
        elif mn.startswith("global_") or mn.startswith("buffer_"):
            c = "vmem"
            if mn.startswith("global_load_lds") or (mn.startswith("buffer_load") and " lds" in " " + self.mods):
                for o in ops:
                    R += regs_of(o)
                R.append("m0")
            elif "_load_" in mn:
                W = regs_of(ops[0])
                for o in ops[1:]:
                    R += regs_of(o)
            elif "atomic" in mn and "sc0" in self.mods:
                W = regs_of(ops[0])
                for o in ops[1:]:
                    R += regs_of(o)
            else:
                for o in ops:
                    R += regs_of(o)
        elif mn.startswith("ds_"):
            c = "ds"
            if mn.startswith("ds_read") or mn.startswith("ds_bpermute") or mn.startswith("ds_swizzle") \
                    or mn.startswith("ds_permute"):
                W = regs_of(ops[0])
                for o in ops[1:]:
                    R += regs_of(o)
            else:
                for o in ops:
                    R += regs_of(o)
        elif mn.startswith("s_load") or mn in ("s_memtime", "s_memrealtime"):
            c = "smem"
            W = regs_of(ops[0])
            for o in ops[1:]:
                R += regs_of(o)
        elif mn in ("s_waitcnt", "s_nop", "s_barrier", "s_sleep", "s_setprio", "s_endpgm", "s_branch") \
                or mn.startswith("s_cbranch"):
            c = "ctl"
        elif mn.startswith("s_"):
            c = "salu"
            if mn.startswith("s_cmp") or mn.startswith("s_bitcmp"):
                for o in ops:
                    R += regs_of(o)
            elif "saveexec" in mn:
                W = regs_of(ops[0]) + ["exec"]
                R = ["exec"]
                for o in ops[1:]:
                    R += regs_of(o)
            elif mn.startswith("s_getreg"):
                W = regs_of(ops[0])
            else:
                W = regs_of(ops[0])
                for o in ops[1:]:
                    R += regs_of(o)
        else:
            raise ValueError("unknown instruction: " + text)
        self.cls = c
        self.reads = R
        self.writes = W


class Asm:
    def __init__(self):
        self.out = []
        self.pos = 0
        self.wr = {}
        self.mfma_c = {}
        self.mfma_d = {}
        self.st_data = {}
        self.vm = []
        self.lg = []
        self.nid = 0
        self.nlabel = 0
        self.ninstr = 0
        self.stats = {}
        self.dma_ctx = None
        self.bg = []
        self.bg_acc = 0
        self.bg_pace = 72
        self.in_bg = False
        self.bg_hold = 0
        self.exec_full = True

    def bg_add(self, op, dst=(), src=(), key=None, due=None, cost=None):
        if due is None:
            due = max([e["due"] for e in self.bg], default=0)
        e = dict(op=op, dst=set(dst), src=set(src), key=key, due=due, cost=cost)
        i = len(self.bg)
        while i > 0 and self.bg[i - 1]["due"] > due:
            i -= 1
        self.bg.insert(i, e)

    def _bg_emit(self):
        e = self.bg.pop(0)
        assert self.exec_full, "background operation under a partial EXEC"
        self.in_bg = True
        e["op"]()
        self.in_bg = False

    def bg_burst(self, n):
        while n > 0 and self.bg:
            self._bg_emit()
            n -= 1
        self.bg_acc = 0

    def bg_flush(self, key=None):
        last = -1
        for i, e in enumerate(self.bg):
            if key is None or e["key"] == key:
                last = i
        for _ in range(last + 1):
            self._bg_emit()

    def _bg_deps(self, ins):
        touched = set(ins.reads) | set(ins.writes)
        wr = set(ins.writes)
        last = -1
        for i, e in enumerate(self.bg):
            if e["dst"] & touched or e["src"] & wr:
                last = i
        for _ in range(last + 1):
            self._bg_emit()

    def _bg_tick(self):
        if self.bg and not self.bg_hold and self.exec_full:
            self.bg_acc = min(self.bg_acc, 2 * self.bg_pace)
            while self.bg and self.bg_acc >= 0:
                self.bg_acc -= self.bg[0]["cost"] or self.bg_pace
                self._bg_emit()

    @staticmethod
    def _cost(ins):
        if ins.cls == "mfma":
            return 16
        if ins.trans or "permlane" in ins.mn:
            return 8
        return 4

    def raw(self, text):
        self.out.append(text)

    def comment(self, text):
        self.out.append("; " + text)

    def _put(self, text, states=1):
        self.out.append("    " + text)
        self.pos += states
        self.ninstr += 1

    def nop(self, n):
        while n > 0:
            k = min(n, 16)
            self._put(f"s_nop {k-1}", k)
            n -= k

    def newlabel(self, stem):
        self.nlabel += 1
        return f"L_{stem}_{self.nlabel}"

    def _wait(self, vm=None, lg=None):
        parts = []
        if vm is not None:
            vm = min(vm, 63)
            if len(self.vm) > vm:
                self.vm = self.vm[len(self.vm) - vm:] if vm else []
                parts.append(f"vmcnt({vm})")
        if lg is not None:
            lg = min(lg, 15)
            if any(e.get("smem") for e in self.lg):
                lg = 0
            if len(self.lg) > lg:
                self.lg = self.lg[len(self.lg) - lg:] if lg else []
                parts.append(f"lgkmcnt({lg})")
        if parts:
            self._put("s_waitcnt " + " ".join(parts))

    def wait_vm(self, n=0):
        self._wait(vm=n)

    def wait_lg(self, n=0):
        self._wait(lg=n)

    def drain(self):
        self._wait(vm=0, lg=0)

    def force_wait(self, text):
        m = re.search(r"vmcnt\((\d+)\)", text)
        if m:
            n = int(m.group(1))
            self.vm = self.vm[len(self.vm) - n:] if n and len(self.vm) > n else ([] if n == 0 else self.vm)
        m = re.search(r"lgkmcnt\((\d+)\)", text)
        if m:
            n = int(m.group(1))
            self.lg = self.lg[len(self.lg) - n:] if n and len(self.lg) > n else ([] if n == 0 else self.lg)
        self._put("s_waitcnt " + text)

    def vm_token(self):
        return self.nid_vm_last

    def wait_token(self, tok):
        for i, e in enumerate(self.vm):
            if e["id"] == tok:
                self._wait(vm=len(self.vm) - i - 1)
                return

    def lg_token(self):
        return self.nid_lg_last

    def wait_lg_token(self, tok):
        for i, e in enumerate(self.lg):
            if e["id"] == tok:
                self._wait(lg=len(self.lg) - i - 1)
                return

    def _auto_wait(self, ins):
        touched = set(ins.reads) | set(ins.writes)
        nvm = None
        for i, e in enumerate(self.vm):
            if e["dst"] & touched:
                nvm = len(self.vm) - i - 1
        nlg = None
        for i, e in enumerate(self.lg):
            if e["dst"] & touched:
                nlg = len(self.lg) - i - 1
        if nvm is not None or nlg is not None:
            self._wait(vm=nvm, lg=nlg)

    def _need(self, ins):
        need = 0

        def req(prod_pos, states):
            nonlocal need
            have = self.pos - prod_pos - 1
            if states - have > need:
                need = states - have

        c = ins.cls
        for r in ins.reads:
            w = self.wr.get(r)
            if w is None:
                continue
            p, kind = w
            if kind in ("valu", "trans"):
                if r[0] in "va" and r != "vcc":
                    if c == "mfma":
                        req(p, 2)
                    elif c == "valu":
                        if kind == "trans":
                            req(p, 1)
                        if ins.mn.startswith("v_readfirstlane") or ins.mn.startswith("v_readlane"):
                            req(p, 1)
                        if ins.mn.startswith("v_permlane") or "dpp" in ins.mn or "row_" in ins.mods \
                                or "quad_perm" in ins.mods:
                            req(p, 2)
                elif r == "exec":
                    if c == "mfma":
                        req(p, 4)
                    elif c == "valu":
                        req(p, 5)
                else:
                    if c == "valu":
                        req(p, 4 if ins.mn.startswith("v_readlane") or ins.mn.startswith("v_writelane") else 2)
                    elif c == "vmem":
                        req(p, 5)
                    elif c in ("salu", "smem"):
                        req(p, 1)
            elif kind == "salu":
                if r == "m0" and c == "vmem":
                    req(p, 1)
            if r in self.mfma_d:
                p, tup = self.mfma_d[r]
                if c == "mfma":
                    cre = regs_of(ins.ops[3])
                    if r in cre and tuple(cre) == tup and r not in regs_of(ins.ops[1]) + regs_of(ins.ops[2]):
                        pass
                    elif r in cre and r not in regs_of(ins.ops[1]) + regs_of(ins.ops[2]):
                        req(p, 6)
                    else:
                        req(p, 8)
                else:
                    req(p, 8)
        for r in ins.writes:
            if r in self.mfma_d:
                p, tup = self.mfma_d[r]
                if c == "mfma":
                    if not (tuple(ins.writes) == tup and tuple(regs_of(ins.ops[3])) == tup):
                        req(p, 8)
                else:
                    req(p, 8)
            if r in self.mfma_c and c == "valu":
                req(self.mfma_c[r], 3)
            if r in self.st_data:
                req(self.st_data[r], 2 if c == "valu" else 1)
        return need

    def _record(self, ins):
        c = ins.cls
        p = self.pos - 1
        for r in ins.writes:
            self.mfma_d.pop(r, None)
            if c == "valu":
                self.wr[r] = (p, "trans" if ins.trans else "valu")
            else:
                self.wr[r] = (p, c)
        if c == "mfma":
            tup = tuple(ins.writes)
            for r in tup:
                self.mfma_d[r] = (p, tup)
            for r in regs_of(ins.ops[3]):
                self.mfma_c[r] = p
        if c == "vmem":
            self.nid += 1
            self.nid_vm_last = self.nid
            self.vm.append(dict(dst=set(ins.writes), id=self.nid))
            if "store" in ins.mn and ("x4" in ins.mn or "x3" in ins.mn):
                data = ins.ops[1] if ins.mn.startswith("global") else ins.ops[0]
                for r in regs_of(data):
                    self.st_data[r] = p
        elif c == "ds":
            self.nid += 1
            self.nid_lg_last = self.nid
            self.lg.append(dict(dst=set(ins.writes), id=self.nid))
            if ins.mn in ("ds_write_b128", "ds_write_b96"):
                for r in regs_of(ins.ops[1]):
                    self.st_data[r] = p
        elif c == "smem":
            self.nid += 1
            self.lg.append(dict(dst=set(ins.writes), id=self.nid, smem=True))

    def touch(self, text):
        ins = Ins(text)
        n = self._need(ins)
        if n > 0:
            self.nop(n)
        self._put(text)
        self.nid += 1
        self.nid_vm_last = self.nid
        self.vm.append(dict(dst=set(), id=self.nid))

    def I(self, text):
        ins = Ins(text)
        if ins.mn == "s_nop":
            self._put(text, int(ins.ops[0]) + 1)
            return
        if ins.mn == "s_waitcnt":
            self.force_wait(text.split(None, 1)[1])
            return
        if not self.in_bg and self.bg:
            self._bg_deps(ins)
            if ins.cls in ("valu", "mfma", "ds"):
                self._bg_tick()
        self._auto_wait(ins)
        n = self._need(ins)
        if n > 0:
            self.nop(n)
        self._put(text)
        self._record(ins)
        if "exec" in ins.writes:
            self.exec_full = text.replace(" ", "") == "s_mov_b64exec,-1"
        if not self.in_bg:
            self.bg_acc += self._cost(ins)
        self.stats[ins.cls] = self.stats.get(ins.cls, 0) + 1

    def __call__(self, text):
        for line in text.strip().split("\n"):
            line = line.split(";")[0].strip()
            if line:
                self.I(line)

    def settle(self):
        need = 0
        for r, (p, kind) in self.wr.items():
            if kind in ("valu", "trans"):
                need = max(need, 5 - (self.pos - p - 1))
            elif kind == "salu" and r == "m0":
                need = max(need, 1 - (self.pos - p - 1))
        for r, (p, tup) in self.mfma_d.items():
            need = max(need, 8 - (self.pos - p - 1))
        for r, p in self.st_data.items():
            need = max(need, 2 - (self.pos - p - 1))
        if need > 0:
            self.nop(need)

    def label(self, name, drained=True):
        assert not self.bg, f"background queue not empty at label {name}"
        if drained:
            assert not self.vm and not self.lg, f"outstanding memory ops at label {name}"
        self.dma_ctx = None
        self.settle()
        self.out.append(name + ":")

    def branch(self, text, drained=True):
        assert not self.bg, f"background queue not empty at branch {text}"
        if drained:
            assert not self.vm and not self.lg, f"outstanding memory ops at branch {text}"
        self.settle()
        self._put(text)

    def barrier(self):
        self._wait(lg=0)
        self._put("s_barrier")

    def text(self):
        return "\n".join(self.out) + "\n"
```

```python
from layout import WS, KB, NKS
from gen_prep import (S_OUT, S_DBG, S_WS, S_WAVE, S_RB, S_MEM, S_SLOW, S_LAYER, S_EPOCH,
                      V_TID, V_LANE, V_L16, V_J, V_G, sp, vr, ar, add64, SPIN_MAX, reduce_groups)

S_T0, S_T1, S_T2, S_T3, S_T4, S_T5 = 30, 31, 32, 33, 34, 35
S_WB = 36
S_XB = 38
S_P0 = 40
S_P1 = 42
S_P2 = 44
S_P3 = 46
S_L2E = 48
S_M0B = 50
S_EX = 52
S_EX2 = 54
S_TT0 = 56
S_CT, S_TH = 57, 58
S_STAMP = 60
S_C0, S_C1 = 62, 64
S_SPIN = 66
S_BG0, S_BG1, S_BGP, S_BGS = 78, 79, 80, 82
S_WB2 = 84
S_TCH = 86
S_TB = 88
S_TB2, S_TB3 = 92, 94

V_O8K = 5
V_L16H = 10

LDS_PHI = 128 * KB
LDS_KVF = 148 * KB
LDS_VIMG = 112 * KB
LOG2E = 1.4426950408889634
import os
EXP = os.environ.get("EXP", "")


def f2u(x):
    import struct
    return "0x%08x" % struct.unpack("<I", struct.pack("<f", x))[0]


def mfma(a, d, A, B, C):
    a(f"v_mfma_f32_16x16x32_bf16 {d}, {A}, {B}, {C}")


def lds_frag(n):
    off = n * 1024
    return (V_L16, off) if off < 65536 else (V_L16H, off - 65536)


def stamp(a, st, idx):
    if not st:
        return
    lg = list(a.lg)
    a._put("s_memrealtime s[68:69]")
    a._put("s_memtime s[76:77]")
    a._put("s_waitcnt lgkmcnt(0)")
    a.lg = []
    a._put(f"v_writelane_b32 v253, s68, {idx}")
    a._put(f"v_writelane_b32 v252, s76, {idx}")


def stamp_flush_hold(a, st):
    held, a.bg = a.bg, []
    stamp_flush(a, st)
    a.bg = held


def stamp_flush(a, st):
    if not st:
        return
    skip = a.newlabel("stampf")
    a.drain()
    a(f"s_cmp_lg_u32 s{S_WAVE}, 0")
    a.branch(f"s_cbranch_scc1 {skip}")
    a(f"s_lshl_b32 s70, s2, 8")
    a(f"s_mul_i32 s71, s{S_LAYER}, 128")
    a(f"s_add_u32 s70, s70, s71")
    a(f"s_add_u32 s70, s70, {WS.DBG}")
    a(f"v_lshlrev_b32 v251, 2, v{V_LANE}")
    a(f"v_add_u32 v251, s70, v251")
    a("s_mov_b32 exec_hi, 0")
    a(f"global_store_dword v251, v253, {sp(S_WS)}")
    a("v_add_u32 v251, 0x10000, v251")
    a(f"global_store_dword v251, v252, {sp(S_WS)}")
    a("s_mov_b64 exec, -1")
    a.drain()
    a.label(skip)


def dma_ops(a, base, f0, n, slot0, three=False):
    key = object()

    def setup(n0):
        a(f"s_cselect_b32 s{S_BGS}, 1, 0")
        if three:
            a(f"s_sub_u32 s{S_BG0}, s{S_WAVE}, 1")
            a(f"s_mul_i32 s{S_BG0}, s{S_BG0}, {n*1024}")
        else:
            a(f"s_mul_i32 s{S_BG0}, s{S_WAVE}, {n*1024}")
        a(f"s_add_u32 s{S_BG1}, s{S_BG0}, {(f0 + n0)*1024 + 4096}")
        add64(a, S_BGP, base, f"s{S_BG1}")
        a(f"s_add_u32 m0, s{S_BG0}, {(slot0 + n0)*1024 + 4096}")
        a(f"s_cmp_lg_u32 s{S_BGS}, 0")
    ops = []
    for i in range(n):
        def op(i=i):
            if a.dma_ctx != (key, i // 8):
                setup(i - i % 8)
                a.dma_ctx = (key, i // 8)
            if "nodma" in EXP:
                a("s_nop 0")
                a.nid += 1
                a.nid_vm_last = a.nid
            else:
                a(f"global_load_lds_dwordx4 v{V_L16}, {sp(S_BGP)} offset:{(i % 8)*1024 - 4096} sc1")
        ops.append(op)
    return ops


RING = 112
PERIOD = 784
S_BW = dict(W1=36, Q2=84, WO=96, WGU=98, WD=100)
ARR = dict(W1=(0, 128), Q2=(128, 192), WO=(192, 292), WGU=(292, 544), WD=(544, 784))
CUTS = [0, 24, 48, 72, 96, 112, 128, 152, 176, 192, 208, 224, 248, 272, 292, 316, 336, 364, 392, 420, 448,
        476, 504, 532, 544, 560, 588, 616, 644, 672, 700, 728, 756, 784]


class Seg:
    def __init__(self, a, g0, g1):
        self.a, self.g0, self.g1 = a, g0, g1
        r0, r1 = g0 % PERIOD, (g1 - 1) % PERIOD + 1
        name = [k for k, (lo, hi) in ARR.items() if lo <= r0 and r1 <= hi][0]
        self.base = S_BW[name]
        self.f0 = r0 - ARR[name][0]
        self.n = (g1 - g0) // 4
        self.slot0 = g0 % RING
        assert (g1 - g0) % 4 == 0 and self.slot0 + (g1 - g0) <= RING
        self.tok = None

    def ops(self):
        ops = dma_ops(self.a, self.base, self.f0, self.n, self.slot0)

        def last(f=ops[-1]):
            f()
            self.tok = self.a.vm_token()
        return ops[:-1] + [last]

    def enqueue(self, d0=None, d1=None):
        ops = self.ops()
        for i, f in enumerate(ops):
            due = None if d0 is None else d0 + (d1 - d0) * i / max(1, len(ops) - 1)
            self.a.bg_add(f, src=(f"s{self.base}", f"s{self.base+1}"), key=self, due=due, cost=CW)

    def issue(self):
        for f in self.ops():
            f()

    def wait(self):
        self.a.bg_flush(self)
        self.a.wait_token(self.tok)


class Stream:
    def __init__(self, a):
        self.a = a
        self.cuts = CUTS + [PERIOD + c for c in CUTS[1:]]
        self.segs = {}
        self.issued = 0
        self.ready = 0
        self.limit = PERIOD

    def _new(self, freed):
        out = []
        for g0, g1 in zip(self.cuts, self.cuts[1:]):
            if g0 >= self.issued and g1 - RING <= freed and g1 <= self.limit and g0 == self.issued:
                sg = Seg(self.a, g0, g1)
                self.segs[g0] = sg
                out.append(sg)
                self.issued = g1
        return out

    def start(self):
        for sg in self._new(0):
            sg.issue()

    def point(self, freed, need, d0=None, span=5, force=False, due_of=None):
        a = self.a
        raw = [sg for g0, sg in sorted(self.segs.items()) if self.ready <= g0 < need]
        assert need <= self.issued or need <= self.ready, (need, self.issued)
        then = self._new(freed)
        if not raw and not then and not force:
            return
        for sg in raw:
            sg.wait()
            self.ready = sg.g1
        if then or force:
            a.barrier()
        else:
            a._put("s_barrier")
        for i, sg in enumerate(then):
            if due_of is not None:
                sg.enqueue(*due_of(sg))
            elif d0 is None:
                sg.enqueue()
            else:
                sg.enqueue(d0 + span * i / len(then), d0 + span * (i + 1) / len(then))


def pass_hooks(S, start, nw, nsteps, hs, D=2, limit=None, lead=None):
    def due_of(h):
        def f(sg):
            first = (sg.g0 - start) / nw
            d = max(h + 1, first - (lead or WLEAD)) if first < nsteps else 1000 + first
            return d, d + 3
        return f
    def lim():
        if limit is not None:
            S.limit = limit
    nxt = list(hs) + [nsteps]

    def start_hook():
        lim()
        S.point(start, start + nw * min(nsteps, nxt[0] + D))
    hooks = {}
    for i, h in enumerate(hs):
        def hk(h=h, n=nxt[i + 1]):
            lim()
            S.point(start + nw * min(nsteps, h + D), start + nw * min(nsteps, n + D), due_of=due_of(h))
        hooks[h] = hk
    return start_hook, hooks


def w_base(a, scale_reg, stride, base):
    def f():
        a(f"s_mul_i32 s{S_T0}, s{scale_reg}, {stride}")
        a(f"s_add_u32 s{S_T0}, s{S_T0}, {base}")
        add64(a, S_WB, S_WS, f"s{S_T0}")
    return f


def act_load(a, dst, base, n, sc="sc1"):
    if "noact" in EXP:
        return lambda: a(f"global_load_dwordx4 {dst}, v{V_L16}, {sp(base)} {sc}")
    return lambda: a(f"global_load_dwordx4 {dst}, v{V_O8K + n//8}, {sp(base)} offset:{(n % 8)*1024 - 4096} {sc}")


V_L128 = 250
V_DUMMY = 249


S_SH2, S_SH4 = 90, 91


def touch_items(a, member_reg, stride, base, f0, f1, nshare, due, pair):
    a(f"s_mul_i32 s{S_T0}, s{member_reg}, {stride}")
    a(f"s_add_u32 s{S_T0}, s{S_T0}, {base + f0*1024}")
    a(f"s_add_u32 s{S_T0}, s{S_T0}, s{S_SH2 if nshare == 2 else S_SH4}")
    add64(a, pair, S_WS, f"s{S_T0}")
    step = 8 * 4 * nshare
    items = []
    for k in range(-(-(f1 - f0) // step)):
        def op(k=k):
            if k == 0:
                a.touch(f"global_load_dword v{V_DUMMY}, v{V_L128}, {sp(pair)}")
            else:
                a(f"s_cselect_b32 s{S_BGS}, 1, 0")
                add64(a, S_TCH, pair, k * step * 1024)
                a(f"s_cmp_lg_u32 s{S_BGS}, 0")
                a.touch(f"global_load_dword v{V_DUMMY}, v{V_L128}, {sp(S_TCH)}")
        items.append((due + 0.01 * k, op, (), (f"s{pair}", f"s{pair+1}"), None))
    return items


def queue_touches(a, items, cost=400):
    for d, op, dst, src, key in items:
        a.bg_add(op, dst=dst, src=src, key=key, due=d, cost=cost)


def regset(r):
    from asmgen import regs_of
    return regs_of(r)


def queue_sorted(a, items):
    for d, op, dst, src, key in sorted(items, key=lambda x: x[0]):
        a.bg_add(op, dst=dst, src=src, key=key, due=d)


def seg_items(seg, d0, d1):
    ops = seg.ops()
    return [(d0 + (d1 - d0) * i / max(1, len(ops) - 1), f, (), (f"s{seg.base}", f"s{seg.base+1}"), seg)
            for i, f in enumerate(ops)]


def act_item(a, d, dst, base, n, sc="sc1"):
    return (d, act_load(a, dst, base, n, sc), regset(dst), (f"s{base}", f"s{base+1}"), None)


def gemm_pass(a, steps, wreg, start_hook, hooks, side=None, marks=None):
    side = side or {}
    n = len(steps)
    last_read = {}

    def reads(i):
        out = []
        for t, g in enumerate(steps[i]["g"]):
            av, imm = lds_frag(g % RING)
            txt = f"ds_read_b128 {wreg(i % 3, t)}, v{av} offset:{imm}"

            def f(txt=txt, i=i):
                a(txt)
                last_read[i] = a.lg_token()
            out.append(f)
        return out
    start_hook()
    for i in range(min(2, n)):
        for f in reads(i):
            f()
    for i, sp_ in enumerate(steps):
        if marks and i in marks:
            marks[i]()
        if i in hooks:
            hooks[i]()
        fill = reads(i + 2) if i + 2 < n else []
        extra = list(side.get(i, []))
        a.wait_lg_token(last_read[i])
        B = sp_["B"]
        work = [(t, ti) for t in range(len(sp_["g"])) for ti in range(len(B))]
        queue = []
        while fill or extra:
            if fill:
                queue.append(fill.pop(0))
            if extra:
                queue.append(extra.pop(0))
        per = max(1, -(-len(queue) // len(work)))
        for t, ti in work:
            d = sp_["acc"](ti, t)
            mfma(a, d, wreg(i % 3, t), B[ti], "0" if sp_["zero"] else d)
            for _ in range(per):
                if queue:
                    queue.pop(0)()
        while queue:
            queue.pop(0)()


def interleave(a, streams):
    streams = [list(s) for s in streams]
    while any(streams):
        for s in streams:
            if s:
                a(s.pop(0))


def group_barrier(a, name):
    held, a.bg = a.bg, []
    a.drain()
    a.barrier()
    a(f"s_add_u32 s{S_EPOCH}, s{S_EPOCH}, 1")
    others, top, bail, join = [a.newlabel(name + x) for x in ("_o", "_poll", "_bail", "_j")]
    lf, lj = a.newlabel(name + "_slowst"), a.newlabel(name + "_st")
    a(f"s_cmp_lg_u32 s{S_WAVE}, 0")
    a.branch(f"s_cbranch_scc1 {others}")
    a(f"s_lshl_b32 s{S_T0}, s{S_RB}, 8")
    a(f"s_add_u32 s{S_T0}, s{S_T0}, {WS.GRPFLAG}")
    add64(a, S_P0, S_WS, f"s{S_T0}")
    a(f"s_lshl_b32 s{S_T1}, s{S_MEM}, 2")
    a(f"v_mov_b32 v11, s{S_T1}")
    a(f"v_mov_b32 v12, s{S_EPOCH}")
    a(f"v_lshlrev_b32 v13, 2, v{V_LANE}")
    a("s_mov_b64 exec, 1")
    a(f"s_cmp_lg_u32 s{S_SLOW}, 0")
    a.branch(f"s_cbranch_scc1 {lf}")
    a(f"global_store_dword v11, v12, {sp(S_P0)}")
    a.vm = []
    a.branch(f"s_branch {lj}")
    a.label(lf)
    a("buffer_wbl2 sc1")
    a.drain()
    a(f"global_store_dword v11, v12, {sp(S_P0)} sc1")
    a.vm = []
    a.label(lj)
    a("s_mov_b64 exec, 0xffff")
    a(f"s_mov_b32 s{S_SPIN}, 0")
    a.label(top)
    a(f"global_load_dword v14, v13, {sp(S_P0)} sc1")
    a.force_wait("vmcnt(0)")
    a(f"v_cmp_gt_u32 vcc, s{S_EPOCH}, v14")
    a(f"s_add_u32 s{S_SPIN}, s{S_SPIN}, 1")
    a(f"s_cmp_gt_u32 s{S_SPIN}, {SPIN_MAX}")
    a.branch(f"s_cbranch_scc1 {bail}")
    a.branch(f"s_cbranch_vccnz {top}")
    a.label(bail)
    a("s_mov_b64 exec, -1")
    a(f"s_cmp_eq_u32 s{S_SLOW}, 0")
    a.branch(f"s_cbranch_scc1 {join}")
    a("buffer_inv sc1")
    a.drain()
    a.branch(f"s_branch {join}")
    a.label(others)
    a.label(join)
    a._put("s_barrier")
    a.bg = held


def poll_words(a, name, off_expr, nlanes):
    skip, top, bail = a.newlabel(name + "_w"), a.newlabel(name + "_poll"), a.newlabel(name + "_bail")
    a(f"s_cmp_lg_u32 s{S_WAVE}, 0")
    a.branch(f"s_cbranch_scc1 {skip}")
    off_expr()
    add64(a, S_P0, S_WS, f"s{S_T0}")
    a(f"s_mov_b32 s{S_SPIN}, 0")
    if nlanes == 16:
        a(f"v_lshlrev_b32 v13, 2, v{V_LANE}")
        a("s_mov_b64 exec, 0xffff")
    a.label(top)
    if nlanes == 16:
        a(f"global_load_dword v14, v13, {sp(S_P0)} sc1")
        a.force_wait("vmcnt(0)")
    else:
        a(f"global_load_dwordx4 v[16:19], v{V_L16}, {sp(S_P0)} sc1")
        a.force_wait("vmcnt(0)")
        a("v_min_u32 v16, v16, v17")
        a("v_min_u32 v18, v18, v19")
        a("v_min_u32 v14, v16, v18")
    a("v_cmp_eq_u32 vcc, 0, v14")
    a(f"s_add_u32 s{S_SPIN}, s{S_SPIN}, 1")
    a(f"s_cmp_gt_u32 s{S_SPIN}, {SPIN_MAX}")
    a.branch(f"s_cbranch_scc1 {bail}")
    a.branch(f"s_cbranch_vccnz {top}")
    a.label(bail)
    a("s_mov_b64 exec, -1")
    a.label(skip)
    a.barrier()


KVFLAG_STEP = 12
TCH = os.environ.get('TCH', 'none')
TSTEP = int(os.environ.get('TSTEP', 22))
CW = int(os.environ.get('CW', 72))
ALEAD1, ALEAD3, ALEAD4 = [int(x) for x in os.environ.get('ALEAD', '8,8,10').split(',')]
PACE1, PACE2, PACE3, PACE4 = [int(x) for x in os.environ.get('PACE', '60,60,60,60').split(',')]
BURST1, BURST2, BURST3, BURST4 = [int(x) for x in os.environ.get('BURST', '10,10,10,10').split(',')]
WLEAD = int(os.environ.get('WLEAD', 14))
TOUCH = True


def poll_kv(a, c):
    join, top0, bail0 = [a.newlabel(n) for n in ("pl_join", "pl_t0", "pl_b0")]
    saved = list(a.vm)
    a(f"s_mov_b32 s{S_SPIN}, 0")
    a(f"s_cmp_lg_u32 s{S_WAVE}, 0")
    a.branch(f"s_cbranch_scc1 {join}", drained=False)
    a(f"s_lshl_b32 s{S_T0}, s{S_LAYER}, 4")
    a(f"s_add_u32 s{S_T0}, s{S_T0}, s{c}")
    a(f"s_lshl_b32 s{S_T0}, s{S_T0}, 8")
    a(f"s_add_u32 s{S_T0}, s{S_T0}, {WS.KVFLAG}")
    add64(a, S_P0, S_WS, f"s{S_T0}")
    a(f"v_lshlrev_b32 v13, 2, v{V_LANE}")
    a("s_mov_b64 exec, 0xffff")
    a.label(top0, drained=False)
    a(f"global_load_dword v14, v13, {sp(S_P0)} sc1")
    a.force_wait("vmcnt(0)")
    a("v_cmp_eq_u32 vcc, 0, v14")
    a(f"s_add_u32 s{S_SPIN}, s{S_SPIN}, 1")
    a(f"s_cmp_gt_u32 s{S_SPIN}, {SPIN_MAX}")
    a.branch(f"s_cbranch_scc1 {bail0}")
    a.branch(f"s_cbranch_vccnz {top0}")
    a.label(bail0)
    a("s_mov_b64 exec, -1")
    a.label(join)
    a.vm = saved
    a._put("s_barrier")


def stats_streams(raw, rstd, ext, tmp):
    s, ss = raw, raw + 1
    L = [f"v_add_f32 v{s}, v{s}, v{raw+2}", f"v_add_f32 v{ss}, v{ss}, v{raw+3}"]
    for sw in ("v_permlane16_swap_b32", "v_permlane32_swap_b32"):
        L += [f"v_mov_b32 v{tmp}, v{s}", f"v_mov_b32 v{tmp+1}, v{ss}",
              f"{sw} v{s}, v{tmp}", f"{sw} v{ss}, v{tmp+1}",
              f"v_add_f32 v{s}, v{s}, v{tmp}", f"v_add_f32 v{ss}, v{ss}, v{tmp+1}"]
    L += [f"v_mul_f32 v{s}, {f2u(-1.0/640)}, v{s}",
          f"v_mul_f32 v{ss}, {f2u(1.0/640)}, v{ss}",
          f"v_fma_f32 v{ss}, -v{s}, v{s}, v{ss}",
          f"v_max_f32 v{ss}, 0, v{ss}",
          f"v_add_f32 v{ss}, {f2u(1e-5)}, v{ss}",
          f"v_rsq_f32 v{rstd}, v{ss}",
          f"v_cvt_pk_bf16_f32 v{tmp}, v{s}, v{s}",
          f"v_and_b32 v{tmp}, 0xffff0000, v{tmp}",
          f"v_sub_f32 v{tmp}, v{s}, v{tmp}",
          f"v_cvt_pk_bf16_f32 v{ext}, v{s}, v{tmp}",
          f"v_mov_b32 v{ext+2}, 0",
          f"v_cvt_pk_bf16_f32 v{ext+1}, v{s}, v{ext+2}",
          f"v_mov_b32 v{ext+3}, 0"]
    return L


A_X, A_W, A_PHI = 0, 160, 232
V_ST, V_RS = 16, 24
V_ACC1, V_ACC2, V_EXT = 32, 80, 104


def feature_stream(acc_tiles, rstd, R):
    BA, BB, P, EP, EN, T = R, R + 4, R + 8, R + 20, R + 30, R + 40
    t0, t1, t2 = acc_tiles
    rs = f"v[{rstd}:{rstd+1}]"
    L = []
    for r in (t0, t0 + 2, t1, t1 + 2, t2):
        L.append(f"v_pk_mul_f32 v[{r}:{r+1}], v[{r}:{r+1}], {rs} op_sel_hi:[1,0]")
    L += [f"v_cvt_pk_bf16_f32 v{BA}, v{t0}, v{t0+1}", f"v_cvt_pk_bf16_f32 v{BA+1}, v{t0+2}, v{t0+3}",
          f"v_cvt_pk_bf16_f32 v{BA+2}, v{t1}, v{t1+1}", f"v_cvt_pk_bf16_f32 v{BA+3}, v{t1+2}, v{t1+3}",
          f"v_cvt_pk_bf16_f32 v{BB}, v{t2}, v{t2+1}",
          f"v_mov_b32 v{BB+1}, 0", f"v_mov_b32 v{BB+2}, 0", f"v_mov_b32 v{BB+3}, 0"]
    for t in range(3):
        L.append(f"v_mfma_f32_16x16x32_bf16 {vr(P+4*t)}, {ar(A_PHI+4*t)}, {vr(BA)}, 0")
    for t in range(3):
        L.append(f"v_mfma_f32_16x16x32_bf16 {vr(P+4*t)}, {ar(A_PHI+12+4*t)}, {vr(BB)}, {vr(P+4*t)}")
    p = [P + i for i in range(10)]
    mx, mn, tx, tn = T, T + 2, T + 4, T + 5
    for op, d in (("max", mx), ("min", mn)):
        L.append(f"v_{op}3_f32 v{d}, v{p[0]}, v{p[1]}, v{p[2]}")
        for i in (3, 5, 7):
            L.append(f"v_{op}3_f32 v{d}, v{d}, v{p[i]}, v{p[i+1]}")
        L.append(f"v_{op}_f32 v{d}, v{d}, v{p[9]}")
    L += [f"v_mov_b32 v{tx}, v{mx}", f"v_mov_b32 v{tn}, v{mn}",
          f"v_permlane16_swap_b32 v{mx}, v{tx}", f"v_permlane16_swap_b32 v{mn}, v{tn}",
          f"v_max_f32 v{mx}, v{mx}, v{tx}", f"v_min_f32 v{mn}, v{mn}, v{tn}",
          f"v_mul_f32 v{mx}, s{S_L2E}, v{mx}", f"v_mul_f32 v{mn}, s{S_L2E}, v{mn}"]
    for i in range(0, 10, 2):
        L.append(f"v_pk_fma_f32 v[{EP+i}:{EP+i+1}], v[{p[i]}:{p[i]+1}], {sp(S_L2E)}, v[{mx}:{mx+1}] "
                 f"op_sel_hi:[1,1,0] neg_lo:[0,0,1] neg_hi:[0,0,1]")
        L.append(f"v_pk_fma_f32 v[{EN+i}:{EN+i+1}], v[{p[i]}:{p[i]+1}], {sp(S_L2E)}, v[{mn}:{mn+1}] "
                 f"op_sel_hi:[1,1,0] neg_lo:[0,1,0] neg_hi:[0,1,0]")
    for i in range(10):
        L.append(f"v_exp_f32 v{EP+i}, v{EP+i}")
        L.append(f"v_exp_f32 v{EN+i}, v{EN+i}")
    sP, sN = T + 6, T + 8
    for E_, s_ in ((EP, sP), (EN, sN)):
        L.append(f"v_pk_add_f32 v[{s_}:{s_+1}], v[{E_}:{E_+1}], v[{E_+2}:{E_+3}]")
    for i in (4, 6, 8):
        for E_, s_ in ((EP, sP), (EN, sN)):
            L.append(f"v_pk_add_f32 v[{s_}:{s_+1}], v[{s_}:{s_+1}], v[{E_+i}:{E_+i+1}]")
    L += [f"v_add_f32 v{sP}, v{sP}, v{sP+1}", f"v_add_f32 v{sN}, v{sN}, v{sN+1}",
          f"v_mov_b32 v{tx}, v{sP}", f"v_mov_b32 v{tn}, v{sN}",
          f"v_permlane16_swap_b32 v{sP}, v{tx}", f"v_permlane16_swap_b32 v{sN}, v{tn}",
          f"v_add_f32 v{sP}, v{sP}, v{tx}", f"v_add_f32 v{sN}, v{sN}, v{tn}",
          f"v_rcp_f32 v{sP}, v{sP}", f"v_rcp_f32 v{sN}, v{sN}"]
    for i in range(0, 10, 2):
        L.append(f"v_pk_mul_f32 v[{EP+i}:{EP+i+1}], v[{EP+i}:{EP+i+1}], v[{sP}:{sP+1}] op_sel_hi:[1,0]")
        L.append(f"v_pk_mul_f32 v[{EN+i}:{EN+i+1}], v[{EN+i}:{EN+i+1}], v[{sN}:{sN+1}] op_sel_hi:[1,0]")
    out = [T + 6 + i for i in range(10)]
    for i in range(10):
        L.append(f"v_cvt_pk_bf16_f32 v{out[i]}, v{EP+2*i}, v{EP+2*i+1}")
    return L, out


def phi_image_writes(addr, out, imm):
    return [f"ds_write_b64 v{addr}, v[{out[2*i]}:{out[2*i+1]}] offset:{imm + 8*i}" for i in range(5)]


def k1(a, st, S):
    c = S_MEM
    R0, R1 = 112, 168
    stamp(a, st, 0)
    a(f"s_lshl_b32 s{S_TT0}, s{S_RB}, 3")
    a(f"s_lshl_b32 s{S_T0}, s{S_WAVE}, 1")
    a(f"s_add_u32 s{S_TT0}, s{S_TT0}, s{S_T0}")
    a(f"s_cmp_eq_u32 s{S_LAYER}, 0")
    a(f"s_mov_b32 s{S_T1}, {WS.X2}")
    a(f"s_cselect_b32 s{S_T1}, {WS.XF0}, s{S_T1}")
    a(f"s_mov_b32 s{S_T2}, {WS.ST2}")
    a(f"s_cselect_b32 s{S_T2}, {WS.ST0}, s{S_T2}")
    a(f"s_mul_i32 s{S_T0}, s{S_TT0}, {20*KB}")
    a(f"s_add_u32 s{S_T0}, s{S_T0}, s{S_T1}")
    a(f"s_add_u32 s{S_T0}, s{S_T0}, 4096")
    add64(a, S_XB, S_WS, f"s{S_T0}")
    xreg = lambda ti, ks: ar(A_X + (ti * 20 + ks) * 4)
    a(f"s_lshl_b32 s{S_T0}, s{S_TT0}, 10")
    a(f"s_add_u32 s{S_T0}, s{S_T0}, s{S_T2}")
    a(f"s_add_u32 s{S_T0}, s{S_T0}, 4096")
    add64(a, S_P0, S_WS, f"s{S_T0}")
    a(f"s_mul_i32 s{S_T0}, s{c}, {6*KB}")
    a(f"s_add_u32 s{S_T0}, s{S_T0}, {WS.WPHI + 4096}")
    add64(a, S_P1, S_WS, f"s{S_T0}")
    add64(a, S_P2, S_WS, WS.PBFLAG)
    a(f"s_mul_i32 s{S_T0}, s{S_TT0}, {20*KB}")
    a(f"s_add_u32 s{S_T0}, s{S_T0}, {WS.O}")
    add64(a, S_TB, S_WS, f"s{S_T0}")
    a(f"s_mul_i32 s{S_T0}, s{S_TT0}, {48*KB}")
    a(f"s_mul_i32 s{S_T1}, s{c}, {3*KB}")
    a(f"s_add_u32 s{S_T0}, s{S_T0}, s{S_T1}")
    a(f"s_add_u32 s{S_T0}, s{S_T0}, {WS.HH}")
    add64(a, S_TB2, S_WS, f"s{S_T0}")
    a(f"v_and_b32 v246, 7, v{V_LANE}")
    a(f"v_lshlrev_b32 v246, 7, v246")
    a(f"v_bfe_u32 v245, v{V_LANE}, 3, 1")
    a(f"v_mul_u32_u24 v245, {20*KB}, v245")
    a(f"v_add_u32 v246, v246, v245")
    a(f"s_lshr_b32 s{S_T1}, s{c}, 2")
    a(f"s_add_u32 s{S_T1}, s{S_T1}, 16")
    a(f"s_sub_u32 s{S_T1}, s{S_T1}, s{c}")
    a(f"s_lshl_b32 s{S_T1}, s{S_T1}, 10")
    a(f"v_bfe_u32 v245, v{V_LANE}, 4, 1")
    a(f"v_mul_lo_u32 v245, v245, s{S_T1}")
    a(f"s_lshl_b32 s{S_T1}, s{c}, 10")
    a(f"v_add3_u32 v246, v246, v245, s{S_T1}")
    a(f"v_lshrrev_b32 v245, 5, v{V_LANE}")
    a(f"v_mul_u32_u24 v245, {48*KB}, v245")
    a(f"v_and_b32 v244, 31, v{V_LANE}")
    a(f"v_min_u32 v244, 23, v244")
    a(f"v_lshl_add_u32 v245, v244, 7, v245")
    touches = [(21, lambda: a.touch(f"global_load_dword v{V_DUMMY}, v246, {sp(S_TB)}"), (), (), None),
               (21.1, lambda: a.touch(f"global_load_dword v{V_DUMMY}, v245, {sp(S_TB2)}"), (), (), None)]
    items = [act_item(a, ks - ALEAD1, xreg(ti, ks), S_XB, ti * 20 + ks) for ks in range(20) for ti in range(2)]
    items += [act_item(a, 0, vr(V_ST + 4 * ti), S_P0, ti) for ti in range(2)]
    items += [act_item(a, 9 + n * 0.1, ar(A_PHI + 4 * n), S_P1, n, "") for n in range(6)]
    items += touches
    queue_sorted(a, items)
    a.bg_pace = PACE1
    a.bg_burst(BURST1)
    side = {}
    stl = [stats_streams(V_ST + 4 * ti, V_RS + 2 * ti, V_EXT + 4 * ti, 28 + 2 * ti) for ti in range(2)]
    merged = [x for pair in zip(*stl) for x in pair]
    for n, ins in enumerate(merged):
        side.setdefault(13 + (n * 6) // len(merged), []).append(lambda ins=ins: a(ins))
    def pb_signal():
        a(f"s_lshl_b32 s{S_T0}, s2, 2")
        a(f"s_add_u32 s{S_T0}, s{S_T0}, {WS.PBFLAG}")
        a(f"v_mov_b32 v11, s{S_T0}")
        a("v_mov_b32 v12, 1")
        a(f"s_or_b32 s{S_T0}, s{S_WAVE}, s{S_LAYER}")
        a(f"s_cmp_eq_u32 s{S_T0}, 0")
        a("s_cselect_b64 exec, 1, 0")
        a(f"global_store_dword v11, v12, {sp(S_WS)} sc1")
        a("s_mov_b64 exec, -1")
    V_PB = 240
    side.setdefault(14, []).append(
        lambda: a(f"global_load_dwordx4 {vr(V_PB)}, v{V_L16}, {sp(S_P2)} sc1"))
    start_hook, hooks = pass_hooks(S, 0, 6, NKS, [4, 8, 12, 16], limit=192)
    h4 = hooks[4]

    def hook4():
        h4()
        a._put("s_barrier")
        pb_signal()
    hooks[4] = hook4
    xb = lambda ks: [xreg(0, ks), xreg(1, ks)] if ks < 20 else [vr(V_EXT), vr(V_EXT + 4)]
    acc1 = lambda ti, t: vr(V_ACC1 + (ti * 6 + t) * 4)
    wreg = lambda s, t: ar(A_W + (s * 6 + t) * 4)
    steps = [dict(g=list(range(6 * ks, 6 * ks + 6)), B=xb(ks), acc=acc1, zero=(ks == 0)) for ks in range(NKS)]
    marks = {h: (lambda i=i: stamp(a, st, i)) for h, i in ((0, 13), (2, 27), (6, 29), (10, 31), (14, 17), (18, 18))} if st and "k3hooks" not in EXP else None
    gemm_pass(a, steps, wreg, start_hook, hooks, side, marks)
    stamp(a, st, 19)
    held, a.bg = a.bg, []
    top, ok = a.newlabel("pb_poll"), a.newlabel("pb_ok")
    a(f"v_min_u32 v{V_PB}, v{V_PB}, v{V_PB+1}")
    a(f"v_min_u32 v{V_PB+2}, v{V_PB+2}, v{V_PB+3}")
    a(f"v_min_u32 v{V_PB}, v{V_PB}, v{V_PB+2}")
    a(f"v_cmp_eq_u32 vcc, 0, v{V_PB}")
    saved_vm, saved_lg = list(a.vm), list(a.lg)
    a.branch(f"s_cbranch_vccz {ok}", drained=False)
    a(f"s_mov_b32 s{S_SPIN}, 0")
    a.label(top, drained=False)
    a(f"global_load_dwordx4 {vr(V_PB)}, v{V_L16}, {sp(S_P2)} sc1")
    a.force_wait("vmcnt(0)")
    a(f"v_min_u32 v{V_PB}, v{V_PB}, v{V_PB+1}")
    a(f"v_min_u32 v{V_PB+2}, v{V_PB+2}, v{V_PB+3}")
    a(f"v_min_u32 v{V_PB}, v{V_PB}, v{V_PB+2}")
    a(f"v_cmp_eq_u32 vcc, 0, v{V_PB}")
    a(f"s_add_u32 s{S_SPIN}, s{S_SPIN}, 1")
    a(f"s_cmp_gt_u32 s{S_SPIN}, {SPIN_MAX}")
    a.branch(f"s_cbranch_scc1 {ok}", drained=False)
    a.branch(f"s_cbranch_vccnz {top}", drained=False)
    a.label(ok, drained=False)
    a.vm, a.lg = saved_vm, saved_lg
    a.bg = held
    S.limit = PERIOD
    S.point(128, 128, force=True)
    stamp(a, st, 1)
    a.bg_pace = 72

    a(f"v_lshrrev_b32 v11, 1, v{V_G}")
    a(f"v_and_b32 v12, 1, v{V_G}")
    a(f"v_lshlrev_b32 v13, 7, v11")
    a(f"s_lshl_b32 s{S_T0}, s{S_WAVE}, 5")
    a(f"v_add3_u32 v13, v13, v{V_J}, s{S_T0}")
    a(f"v_mul_u32_u24 v14, 80, v13")
    a(f"v_mul_u32_u24 v15, 40, v12")
    a(f"v_add_u32 v14, v14, v15")
    a(f"v_add_u32 v14, {LDS_PHI}, v14")
    a(f"v_lshlrev_b32 v15, 6, v13")
    a(f"v_lshlrev_b32 v12, 4, v12")
    a(f"v_add_u32 v15, v15, v12")
    a(f"v_add_u32 v15, {LDS_VIMG}, v15")
    strm = []
    for ti, R in ((0, R0), (1, R1)):
        b = V_ACC1 + ti * 24
        L, out = feature_stream((b, b + 4, b + 8), V_RS + 2 * ti, R)
        L += phi_image_writes(14, out, ti * 16 * 80)
        vb = b + 12
        rs = f"v[{V_RS+2*ti}:{V_RS+2*ti+1}]"
        for r in (vb, vb + 2, vb + 4, vb + 6, vb + 8):
            L.append(f"v_pk_mul_f32 v[{r}:{r+1}], v[{r}:{r+1}], {rs} op_sel_hi:[1,0]")
        W = R
        L += [f"v_cvt_pk_bf16_f32 v{W}, v{vb}, v{vb+1}", f"v_cvt_pk_bf16_f32 v{W+1}, v{vb+2}, v{vb+3}",
              f"v_cvt_pk_bf16_f32 v{W+2}, v{vb+4}, v{vb+5}", f"v_cvt_pk_bf16_f32 v{W+3}, v{vb+6}, v{vb+7}",
              f"v_mov_b32 v{W+5}, 1.0",
              f"v_cvt_pk_bf16_f32 v{W+4}, v{vb+8}, v{W+5}", f"v_cvt_pk_bf16_f32 v{W+6}, v{vb+9}, v{W+5}",
              f"v_mov_b32 v{W+5}, 0", f"v_mov_b32 v{W+7}, 0",
              f"ds_write_b128 v15, {vr(W)} offset:{ti*16*64}",
              f"ds_write_b128 v15, {vr(W+4)} offset:{ti*16*64 + 32}"]
        strm.append(L)
    interleave(a, strm)
    a.barrier()
    stamp(a, st, 2)

    a(f"s_lshr_b32 s{S_T0}, s{S_WAVE}, 1")
    a(f"s_and_b32 s{S_T1}, s{S_WAVE}, 1")
    a(f"v_bfe_u32 v11, v{V_LANE}, 2, 2")
    a(f"v_lshl_add_u32 v11, v{V_G}, 3, v11")
    a(f"s_lshl_b32 s{S_T2}, s{S_T0}, 7")
    a(f"v_add_u32 v11, s{S_T2}, v11")
    a(f"v_and_b32 v12, 3, v{V_LANE}")
    a(f"v_lshlrev_b32 v12, 3, v12")
    a(f"v_mul_u32_u24 v13, 80, v11")
    a(f"v_add_u32 v13, v13, v12")
    a(f"v_add_u32 v13, {LDS_PHI}, v13")
    a(f"v_lshlrev_b32 v14, 6, v11")
    a(f"s_lshl_b32 s{S_T2}, s{S_T1}, 5")
    a(f"s_add_u32 s{S_T2}, s{S_T2}, {LDS_VIMG}")
    a(f"v_add3_u32 v14, v14, v12, s{S_T2}")
    KA, KB_, KD = R0, R0 + 48, R0 + 64
    for kap in range(4):
        for x in range(2):
            a(f"ds_read_b64_tr_b16 v[{KB_+4*kap+2*x}:{KB_+4*kap+2*x+1}], v14 offset:{(32*kap + 4*x)*64}")
        for ft in range(3):
            r = KA + (kap * 3 + ft) * 4
            for x in range(2):
                a(f"ds_read_b64_tr_b16 v[{r+2*x}:{r+2*x+1}], v13 offset:{(32*kap + 4*x)*80 + 32*ft}")
    for kap in range(4):
        for ft in range(3):
            mfma(a, vr(KD + 4 * ft), vr(KA + (kap * 3 + ft) * 4), vr(KB_ + 4 * kap), "0" if kap == 0 else vr(KD + 4 * ft))
    a(f"v_lshrrev_b32 v11, 2, v{V_J}")
    a(f"v_lshlrev_b32 v11, 1, v11")
    a(f"v_and_b32 v12, 1, v{V_J}")
    a(f"v_add_u32 v11, v11, v12")
    a(f"v_lshl_add_u32 v11, v{V_G}, 3, v11")
    a(f"s_cmp_eq_u32 s{S_T1}, 1")
    a("s_cselect_b64 vcc, -1, 0")
    a(f"s_mov_b32 s{S_EX}, 0x33333333")
    a(f"s_cselect_b32 s{S_EX}, s{S_EX}, -1")
    a(f"s_mov_b32 s{S_EX+1}, s{S_EX}")
    a(f"s_mov_b32 s{S_EX2}, s{S_EX}")
    a(f"s_mov_b32 s{S_EX2+1}, 0")
    a(f"v_lshlrev_b32 v12, 4, v11")
    a(f"v_add_u32 v12, 1024, v12")
    a(f"v_cndmask_b32 v12, v{V_L16}, v12, vcc")
    a(f"v_lshlrev_b32 v13, 3, v11")
    a(f"v_add_u32 v13, 1792, v13")
    a(f"v_lshlrev_b32 v14, 3, v{V_LANE}")
    a(f"v_add_u32 v14, 1536, v14")
    a(f"v_cndmask_b32 v13, v14, v13, vcc")
    a(f"s_lshl_b32 s{S_T2}, s{S_LAYER}, 4")
    a(f"s_add_u32 s{S_T2}, s{S_T2}, s{c}")
    a(f"s_lshl_b32 s{S_T3}, s{S_T2}, 16")
    a(f"s_add_u32 s{S_T3}, s{S_T3}, {WS.KVP}")
    a(f"s_lshl_b32 s{S_T4}, s{S_RB}, 12")
    a(f"s_add_u32 s{S_T4}, s{S_T4}, s{S_T3}")
    a(f"s_mul_i32 s{S_T0}, s{S_T0}, 1920")
    a(f"s_add_u32 s{S_T4}, s{S_T4}, s{S_T0}")
    add64(a, S_P0, S_WS, f"s{S_T4}")
    add64(a, S_P1, S_WS, f"s{S_T3}")
    PK = R0 + 76
    for n, (t, r) in enumerate(((0, 0), (0, 2), (1, 0), (1, 2), (2, 0), (2, 2))):
        a(f"v_cvt_pk_bf16_f32 v{PK+n}, v{KD+4*t+r}, v{KD+4*t+r+1}")
    a(f"s_mov_b64 exec, {sp(S_EX)}")
    a(f"global_store_dwordx4 v12, {vr(PK)}, {sp(S_P0)} sc1")
    a(f"s_mov_b64 exec, {sp(S_EX2)}")
    a(f"global_store_dwordx2 v13, v[{PK+4}:{PK+5}], {sp(S_P0)} sc1")
    pub_tok = a.vm_token()
    a("s_mov_b64 exec, -1")
    a(f"s_lshl_b32 s{S_T2}, s{S_T2}, 8")
    a(f"s_lshl_b32 s{S_T0}, s{S_RB}, 2")
    a(f"s_add_u32 s{S_T2}, s{S_T2}, s{S_T0}")
    a(f"s_add_u32 s{S_T2}, s{S_T2}, {WS.KVFLAG}")
    a(f"v_mov_b32 v11, s{S_T2}")
    a("v_mov_b32 v12, 1")
    stamp(a, st, 3)

    def raise_flag():
        a.wait_token(pub_tok)
        a._put("s_barrier")
        a(f"s_cmp_eq_u32 s{S_WAVE}, 0")
        a("s_cselect_b64 exec, 1, 0")
        a(f"global_store_dword v11, v12, {sp(S_WS)} sc1")
        a("s_mov_b64 exec, -1")
    start_hook, hooks = pass_hooks(S, 128, 3, NKS, [7, KVFLAG_STEP])
    h12 = hooks[KVFLAG_STEP]

    def hook12():
        h12()
        raise_flag()
        if "t3" in TCH:
            queue_touches(a, touch_items(a, S_MEM, 3 * NKS * 4 * KB, WS.WGU, 100, 252, 2, -1, S_TB))
    hooks[KVFLAG_STEP] = hook12
    acc2 = lambda ti, t: vr(V_ACC2 + (ti * 3 + t) * 4)
    wreg2 = lambda s, t: ar(A_W + (s * 3 + t) * 4)
    steps = [dict(g=list(range(128 + 3 * ks, 128 + 3 * ks + 3)), B=xb(ks), acc=acc2, zero=(ks == 0))
             for ks in range(NKS)]
    a.barrier()
    gemm_pass(a, steps, wreg2, start_hook, hooks)
    S.point(192, 192, force=True)
    stamp(a, st, 4)
    a(f"v_lshrrev_b32 v11, 1, v{V_G}")
    a(f"v_and_b32 v12, 1, v{V_G}")
    a(f"v_lshlrev_b32 v13, 7, v11")
    a(f"s_lshl_b32 s{S_T0}, s{S_WAVE}, 5")
    a(f"v_add3_u32 v13, v13, v{V_J}, s{S_T0}")
    a(f"v_mul_u32_u24 v14, 80, v13")
    a(f"v_mul_u32_u24 v15, 40, v12")
    a(f"v_add_u32 v14, v14, v15")
    a(f"v_add_u32 v14, {LDS_PHI}, v14")
    strm = []
    for ti, R in ((0, R0), (1, R1)):
        b = V_ACC2 + ti * 12
        L, out = feature_stream((b, b + 4, b + 8), V_RS + 2 * ti, R)
        L += phi_image_writes(14, out, ti * 16 * 80)
        strm.append(L)
    interleave(a, strm)
    stamp(a, st, 5)

    held, a.bg = a.bg, []
    a.wait_lg(0)
    poll_kv(a, c)
    a.bg = held
    stamp(a, st, 6)
    G0, SEL, GD = R0, R0 + 64, R0 + 68
    a(f"v_lshlrev_b32 v11, 12, v{V_G}")
    a(f"v_lshl_add_u32 v11, v{V_J}, 4, v11")
    a(f"s_lshl_b32 s{S_T0}, s{S_WAVE}, 8")
    a(f"v_add_u32 v11, s{S_T0}, v11")
    for q in range(4):
        a(f"v_add_u32 v{12+q}, {q*16384}, v11")
    for n in range(4):
        for q in range(4):
            a(f"global_load_dwordx4 {vr(G0 + (n*4 + q)*4)}, v{12+q}, {sp(S_P1)} offset:{n*1024} sc1")
    for q in range(4):
        a(f"v_cmp_eq_u32 vcc, {2*q}, v{V_J}")
        a(f"v_cndmask_b32 v28, 0, 1, vcc")
        a(f"v_cmp_eq_u32 vcc, {2*q+1}, v{V_J}")
        a(f"v_cndmask_b32 v29, 0, 1, vcc")
        a(f"v_mul_u32_u24 v28, 0x3f80, v28")
        a(f"v_mul_u32_u24 v29, 0x3f80, v29")
        a(f"v_lshl_or_b32 v{SEL+q}, v29, 16, v28")
    for n in range(4):
        for q in range(4):
            mfma(a, vr(GD + 4 * n), vr(SEL), vr(G0 + (n * 4 + q) * 4), "0" if q == 0 else vr(GD + 4 * n))
    a(f"v_lshlrev_b32 v11, 4, v{V_J}")
    a(f"v_lshl_add_u32 v11, v{V_G}, 3, v11")
    a(f"s_lshl_b32 s{S_T0}, s{S_WAVE}, 8")
    a(f"s_add_u32 s{S_T0}, s{S_T0}, {LDS_KVF}")
    a(f"v_add_u32 v11, s{S_T0}, v11")
    for n in range(4):
        a(f"v_cvt_pk_bf16_f32 v{G0+2*n}, v{GD+4*n}, v{GD+4*n+1}")
        a(f"v_cvt_pk_bf16_f32 v{G0+2*n+1}, v{GD+4*n+2}, v{GD+4*n+3}")
    a("s_mov_b32 exec_hi, 0")
    for n in range(4):
        a(f"ds_write_b64 v11, v[{G0+2*n}:{G0+2*n+1}] offset:{n*1024}")
    a("s_mov_b64 exec, -1")
    a.barrier()

    KF = R0
    a(f"v_lshrrev_b32 v11, 2, v{V_J}")
    a(f"v_lshlrev_b32 v11, 1, v11")
    a(f"v_and_b32 v12, 1, v{V_J}")
    a(f"v_add_u32 v11, v11, v12")
    a(f"v_lshl_add_u32 v11, v{V_G}, 3, v11")
    a(f"v_lshlrev_b32 v12, 4, v11")
    a(f"v_add_u32 v12, {LDS_KVF + 1024}, v12")
    a(f"v_lshlrev_b32 v13, 3, v11")
    a(f"v_add_u32 v13, {LDS_KVF + 1792}, v13")
    a(f"v_lshlrev_b32 v14, 3, v{V_LANE}")
    a(f"v_add_u32 v14, {LDS_KVF + 1536}, v14")
    a(f"v_add_u32 v15, {LDS_KVF}, v{V_L16}")
    for hh in range(2):
        for r in range(8, 16):
            a(f"v_mov_b32 v{KF + 16*hh + r}, 0")
    for hh in range(2):
        b = KF + 16 * hh
        a(f"ds_read_b128 {vr(b)}, v15 offset:{hh*1920}")
        a(f"ds_read_b128 {vr(b+4)}, v12 offset:{hh*1920}")
    a("s_mov_b32 exec_hi, 0")
    for hh in range(2):
        b = KF + 16 * hh
        a(f"ds_read_b64 v[{b+8}:{b+9}], v14 offset:{hh*1920}")
        a(f"ds_read_b64 v[{b+12}:{b+13}], v13 offset:{hh*1920}")
    a("s_mov_b64 exec, -1")
    QF = R0 + 32
    a(f"s_lshl_b32 s{S_T0}, s{S_WAVE}, 5")
    a(f"v_add_u32 v11, s{S_T0}, v{V_J}")
    a(f"v_mul_u32_u24 v11, 80, v11")
    a(f"v_lshl_add_u32 v11, v{V_G}, 3, v11")
    a(f"v_add_u32 v11, {LDS_PHI}, v11")
    for ti in range(2):
        for hh in range(2):
            b = QF + (ti * 2 + hh) * 8
            a(f"v_mov_b32 v{b+6}, 0")
            a(f"v_mov_b32 v{b+7}, 0")
    for ti in range(2):
        for hh in range(2):
            b = QF + (ti * 2 + hh) * 8
            off = (hh * 128 + 16 * ti) * 80
            assert off % 8 == 0
            if off // 8 + 4 <= 255:
                a(f"ds_read2_b64 {vr(b)}, v11 offset0:{off//8} offset1:{off//8 + 4}")
            else:
                a(f"ds_read_b64 v[{b}:{b+1}], v11 offset:{off}")
                a(f"ds_read_b64 v[{b+2}:{b+3}], v11 offset:{off + 32}")
            a(f"ds_read_b64 v[{b+4}:{b+5}], v11 offset:{off + 64}")
    OD = R0 + 64
    for ti in range(2):
        for hh in range(2):
            kb, qb, o = KF + 16 * hh, QF + (ti * 2 + hh) * 8, OD + (ti * 2 + hh) * 8
            mfma(a, vr(o), vr(kb), vr(qb), "0")
            mfma(a, vr(o + 4), vr(kb + 4), vr(qb), "0")
    for ti in range(2):
        for hh in range(2):
            kb, qb, o = KF + 16 * hh, QF + (ti * 2 + hh) * 8, OD + (ti * 2 + hh) * 8
            mfma(a, vr(o), vr(kb + 8), vr(qb + 4), vr(o))
            mfma(a, vr(o + 4), vr(kb + 12), vr(qb + 4), vr(o + 4))
    a(f"s_mul_i32 s{S_T0}, s{S_LAYER}, {0 if REUSE else 128*20*KB}")
    a(f"s_mul_i32 s{S_T1}, s{S_TT0}, {20*KB}")
    a(f"s_add_u32 s{S_T0}, s{S_T0}, s{S_T1}")
    a(f"s_add_u32 s{S_T0}, s{S_T0}, {WS.O}")
    a(f"s_lshl_b32 s{S_T1}, s{c}, 10")
    a(f"s_add_u32 s{S_T1}, s{S_T1}, s{S_T0}")
    add64(a, S_P0, S_WS, f"s{S_T1}")
    add64(a, S_P1, S_P0, 20 * KB)
    a(f"s_lshr_b32 s{S_T1}, s{c}, 2")
    a(f"s_add_u32 s{S_T1}, s{S_T1}, 16")
    a(f"s_lshl_b32 s{S_T1}, s{S_T1}, 10")
    a(f"s_add_u32 s{S_T1}, s{S_T1}, s{S_T0}")
    a(f"s_and_b32 s{S_T2}, s{c}, 3")
    a(f"s_lshl_b32 s{S_T2}, s{S_T2}, 2")
    a(f"s_add_u32 s{S_T1}, s{S_T1}, s{S_T2}")
    add64(a, S_P2, S_WS, f"s{S_T1}")
    add64(a, S_P3, S_P2, 20 * KB)
    OP = R0
    for ti in range(2):
        vals = []
        for hh in range(2):
            o = OD + (ti * 2 + hh) * 8
            a(f"v_add_f32 v{o+5}, {f2u(1e-6)}, v{o+5}")
            a(f"v_rcp_f32 v{o+5}, v{o+5}")
        for hh in range(2):
            o = OD + (ti * 2 + hh) * 8
            for m in range(5):
                a(f"v_mul_f32 v{o+m}, v{o+m}, v{o+5}")
                vals.append(o + m)
        for n in range(5):
            a(f"v_cvt_pk_bf16_f32 v{OP + 8*ti + n}, v{vals[2*n]}, v{vals[2*n+1]}")
        a(f"global_store_dwordx4 v{V_L16}, {vr(OP + 8*ti)}, {sp(S_P0 if ti == 0 else S_P1)}")
        a(f"global_store_dword v{V_L16}, v{OP + 8*ti + 4}, {sp(S_P2 if ti == 0 else S_P3)}")
    stamp(a, st, 7)


def out_proj(a, st, S, name, nks, g0, hs, act_base, res_base, dst_base, st_base, final, stamp0, pace):
    A_B, A_WW = 0, 192
    V_ACC, V_RES = 32, 56
    stamp(a, st, stamp0)
    a(f"s_lshl_b32 s{S_TT0}, s{S_RB}, 3")
    a(f"s_lshl_b32 s{S_T0}, s{S_TH}, 2")
    a(f"s_add_u32 s{S_TT0}, s{S_TT0}, s{S_T0}")
    a(f"s_add_u32 s{S_TT0}, s{S_TT0}, s{S_WAVE}")
    act_base()
    a(f"s_mul_i32 s{S_T1}, s{S_TT0}, {nks*KB}")
    a(f"s_add_u32 s{S_T0}, s{S_T0}, s{S_T1}")
    a(f"s_add_u32 s{S_T0}, s{S_T0}, 4096")
    add64(a, S_XB, S_WS, f"s{S_T0}")
    breg = lambda ks: ar(A_B + 4 * ks)
    if nks > 40:
        add64(a, S_P2, S_XB, 40 * KB)
    items = [act_item(a, ks - ALEAD4, breg(ks), S_XB if ks < 40 else S_P2, ks if ks < 40 else ks - 40)
             for ks in range(nks)]
    queue_sorted(a, items)
    a.bg_pace = pace
    a.bg_burst(BURST2 if nks == 20 else BURST4)
    a(f"s_lshr_b32 s{S_T2}, s{S_CT}, 1")
    a(f"s_mul_i32 s{S_T2}, s{S_T2}, 5")
    a(f"s_and_b32 s{S_T3}, s{S_CT}, 1")
    a(f"s_mul_i32 s{S_T4}, s{S_T3}, 3")
    a(f"s_add_u32 s{S_T4}, s{S_T4}, s{S_T2}")
    a(f"s_add_u32 s{S_T2}, s{S_T2}, 2")
    a(f"s_mul_i32 s{S_T5}, s{S_TT0}, 20")
    a(f"s_add_u32 s{S_T4}, s{S_T4}, s{S_T5}")
    a(f"s_lshl_b32 s74, s{S_T4}, 10")
    a(f"s_add_u32 s{S_T2}, s{S_T2}, s{S_T5}")
    a(f"s_lshl_b32 s{S_T2}, s{S_T2}, 10")
    a(f"s_lshl_b32 s{S_T3}, s{S_T3}, 9")
    a(f"s_add_u32 s75, s{S_T2}, s{S_T3}")
    a(f"v_lshrrev_b32 v11, 1, v{V_G}")
    a(f"v_lshlrev_b32 v11, 8, v11")
    a(f"v_lshl_add_u32 v11, v{V_J}, 4, v11")
    a(f"v_and_b32 v12, 1, v{V_G}")
    a(f"v_lshl_add_u32 v11, v12, 3, v11")
    res_base()
    a(f"s_add_u32 s{S_T1}, s{S_T0}, s74")
    add64(a, S_P0, S_WS, f"s{S_T1}")
    a(f"s_add_u32 s{S_T1}, s{S_T0}, s75")
    add64(a, S_P1, S_WS, f"s{S_T1}")
    res_tok = []
    side = {}
    side.setdefault(nks - 12 if nks == 20 else 20, []).extend([
        lambda: a(f"global_load_dwordx4 {vr(V_RES)}, v{V_L16}, {sp(S_P0)} sc1"),
        lambda: a(f"global_load_dwordx4 {vr(V_RES+4)}, v{V_L16}, {sp(S_P0)} offset:1024 sc1"),
        lambda: a(f"global_load_dwordx2 v[{V_RES+8}:{V_RES+9}], v11, {sp(S_P1)} sc1"),
        lambda: res_tok.append(a.vm_token())])
    acc = lambda ti, t: vr(V_ACC + 4 * t)
    wreg = lambda s, t: ar(A_WW + (s * 5 + t) * 4)
    steps = [dict(g=list(range(g0 + 5 * ks, g0 + 5 * ks + 5)), B=[breg(ks)], acc=acc, zero=(ks == 0))
             for ks in range(nks)]
    start_hook, hooks = pass_hooks(S, g0, 5, nks, hs)
    gemm_pass(a, steps, wreg, start_hook, hooks, side)
    a.wait_token(res_tok[0])
    S.point(g0 + 5 * nks, g0 + 5 * nks, force=True)
    stamp(a, st, stamp0 + 1)

    X, PK = 72, 96

    def common():
        for n in range(10):
            r = V_RES + n
            a(f"v_lshlrev_b32 v{X+2*n}, 16, v{r}")
            a(f"v_and_b32 v{X+2*n+1}, 0xffff0000, v{r}")
        for n in range(10):
            a(f"v_pk_add_f32 v[{X+2*n}:{X+2*n+1}], v[{X+2*n}:{X+2*n+1}], v[{V_ACC+2*n}:{V_ACC+2*n+1}]")
        for n in range(10):
            a(f"v_cvt_pk_bf16_f32 v{PK+n}, v{X+2*n}, v{X+2*n+1}")

    if final:
        common()
        a(f"s_mul_i32 s{S_T0}, s{S_TT0}, {16*1280}")
        a(f"s_mul_i32 s{S_T1}, s{S_CT}, 160")
        a(f"s_add_u32 s{S_T0}, s{S_T0}, s{S_T1}")
        a(f"s_and_b32 s{S_T2}, s{S_CT}, 1")
        a(f"s_lshl_b32 s{S_T3}, s{S_T2}, 5")
        a(f"s_add_u32 s{S_T3}, s{S_T3}, s{S_T0}")
        add64(a, S_P0, S_OUT, f"s{S_T3}")
        a(f"s_cmp_eq_u32 s{S_T2}, 0")
        a(f"s_cselect_b32 s{S_T3}, 128, 0")
        a(f"s_add_u32 s{S_T3}, s{S_T3}, s{S_T0}")
        add64(a, S_P1, S_OUT, f"s{S_T3}")
        a(f"v_mul_u32_u24 v12, 1280, v{V_J}")
        a(f"v_lshl_add_u32 v13, v{V_G}, 4, v12")
        a(f"v_lshl_add_u32 v14, v{V_G}, 3, v12")
        a(f"global_store_dwordx4 v13, {vr(PK)}, {sp(S_P0)}")
        a(f"global_store_dwordx4 v13, {vr(PK+4)}, {sp(S_P0)} offset:64")
        a(f"global_store_dwordx2 v14, v[{PK+8}:{PK+9}], {sp(S_P1)}")
        stamp(a, st, stamp0 + 2)
        return
    a.bg_pace = 64
    dst_base()
    a(f"s_add_u32 s{S_T1}, s{S_T0}, s74")
    add64(a, S_P0, S_WS, f"s{S_T1}")
    a(f"s_add_u32 s{S_T1}, s{S_T0}, s75")
    add64(a, S_P1, S_WS, f"s{S_T1}")
    st_base()
    a(f"s_lshl_b32 s{S_T1}, s{S_TT0}, 10")
    a(f"s_add_u32 s{S_T0}, s{S_T0}, s{S_T1}")
    a(f"s_lshr_b32 s{S_T1}, s{S_CT}, 1")
    a(f"s_lshl_b32 s{S_T1}, s{S_T1}, 8")
    a(f"s_add_u32 s{S_T0}, s{S_T0}, s{S_T1}")
    a(f"s_and_b32 s{S_T1}, s{S_CT}, 1")
    a(f"s_lshl_b32 s{S_T1}, s{S_T1}, 3")
    a(f"s_add_u32 s{S_T0}, s{S_T0}, s{S_T1}")
    add64(a, S_P2, S_WS, f"s{S_T0}")
    common()
    s_, ss = 108, 110
    a(f"v_pk_add_f32 v[{s_}:{s_+1}], v[{X}:{X+1}], v[{X+2}:{X+3}]")
    a(f"v_pk_mul_f32 v[{ss}:{ss+1}], v[{X}:{X+1}], v[{X}:{X+1}]")
    a(f"v_pk_fma_f32 v[{ss}:{ss+1}], v[{X+2}:{X+3}], v[{X+2}:{X+3}], v[{ss}:{ss+1}]")
    for n in range(2, 10):
        a(f"v_pk_add_f32 v[{s_}:{s_+1}], v[{s_}:{s_+1}], v[{X+2*n}:{X+2*n+1}]")
        a(f"v_pk_fma_f32 v[{ss}:{ss+1}], v[{X+2*n}:{X+2*n+1}], v[{X+2*n}:{X+2*n+1}], v[{ss}:{ss+1}]")
    a(f"v_add_f32 v{s_}, v{s_}, v{s_+1}")
    a(f"v_add_f32 v{s_+1}, v{ss}, v{ss+1}")
    a.bg_hold += 1
    reduce_groups(a, [s_, s_ + 1], 112)
    a(f"global_store_dwordx4 v{V_L16}, {vr(PK)}, {sp(S_P0)}")
    a(f"global_store_dwordx4 v{V_L16}, {vr(PK+4)}, {sp(S_P0)} offset:1024")
    a(f"global_store_dwordx2 v11, v[{PK+8}:{PK+9}], {sp(S_P1)}")
    a("s_mov_b64 exec, 0xffff")
    a(f"global_store_dwordx2 v{V_L16}, v[{s_}:{s_+1}], {sp(S_P2)}")
    a("s_mov_b64 exec, -1")
    a.bg_hold -= 1
    stamp(a, st, stamp0 + 2)


REUSE = True


def layer_off(a, base, stride):
    if REUSE:
        return const_off(a, base)

    def f():
        a(f"s_mul_i32 s{S_T0}, s{S_LAYER}, {stride}")
        a(f"s_add_u32 s{S_T0}, s{S_T0}, {base}")
    return f


def sel_layer(a, base0, base1):
    def f():
        a(f"s_cmp_eq_u32 s{S_LAYER}, 0")
        a(f"s_mov_b32 s{S_T0}, {base1}")
        a(f"s_cselect_b32 s{S_T0}, {base0}, s{S_T0}")
    return f


def const_off(a, base):
    return lambda: a(f"s_mov_b32 s{S_T0}, {base}")


def k2(a, st, S):
    out_proj(a, st, S, "k2", 20, 192, [4, 9, 14], layer_off(a, WS.O, 128 * 20 * KB),
             sel_layer(a, WS.XF0, WS.X2), layer_off(a, WS.X1, 128 * 20 * KB), layer_off(a, WS.ST1, 128 * KB),
             False, 8, PACE2)


def k4(a, st, S, final):
    S.limit = PERIOD if final else 2 * PERIOD
    out_proj(a, st, S, "k4", 48, 544, [4, 10, 16, 22, 28, 34, 40, 46], layer_off(a, WS.HH, 128 * 48 * KB),
             layer_off(a, WS.X1, 128 * 20 * KB), const_off(a, WS.X2), const_off(a, WS.ST2), final, 14, PACE4)


def k3(a, st, S):
    m = S_MEM
    A_WW = 160
    V_ACC = 32
    V_IRS, V_C0 = 96, 100
    stamp(a, st, 11)
    a(f"s_lshl_b32 s{S_TT0}, s{S_RB}, 3")
    a(f"s_lshl_b32 s{S_T0}, s{S_WAVE}, 1")
    a(f"s_add_u32 s{S_TT0}, s{S_TT0}, s{S_T0}")
    layer_off(a, WS.X1, 128 * 20 * KB)()
    a(f"s_mul_i32 s{S_T1}, s{S_TT0}, {20*KB}")
    a(f"s_add_u32 s{S_T0}, s{S_T0}, s{S_T1}")
    a(f"s_add_u32 s{S_T0}, s{S_T0}, 4096")
    add64(a, S_XB, S_WS, f"s{S_T0}")
    xreg = lambda ti, ks: ar((ti * 20 + ks) * 4)
    layer_off(a, WS.ST1, 128 * KB)()
    a(f"s_lshl_b32 s{S_T1}, s{S_TT0}, 10")
    a(f"s_add_u32 s{S_T0}, s{S_T0}, s{S_T1}")
    a(f"s_add_u32 s{S_T0}, s{S_T0}, 4096")
    add64(a, S_P0, S_WS, f"s{S_T0}")
    items = [act_item(a, ks - ALEAD3, xreg(ti, ks), S_XB, ti * 20 + ks) for ks in range(20) for ti in range(2)]
    items += [act_item(a, -2, vr(V_ST + 4 * ti), S_P0, ti) for ti in range(2)]
    queue_sorted(a, items)
    a.bg_pace = PACE3
    a.bg_burst(BURST3)
    layer_off(a, WS.HH, 128 * 48 * KB)()
    a(f"s_mul_i32 s{S_T1}, s{S_TT0}, {48*KB}")
    a(f"s_add_u32 s{S_T0}, s{S_T0}, s{S_T1}")
    a(f"s_mul_i32 s{S_T1}, s{m}, {3*KB}")
    a(f"s_add_u32 s{S_T0}, s{S_T0}, s{S_T1}")
    add64(a, S_P1, S_WS, f"s{S_T0}")
    add64(a, S_P2, S_P1, 48 * KB)
    c0 = -2.0 * LOG2E * 0.7978845608028654
    c1 = c0 * 0.044715
    a(f"v_mov_b32 v{V_C0}, {f2u(c0)}")
    a(f"v_mov_b32 v{V_C0+1}, {f2u(c0)}")
    a(f"s_mov_b32 s{S_C1}, {f2u(c1)}")
    a(f"s_mov_b32 s{S_C1+1}, {f2u(c1)}")

    side = {}
    stl = [stats_streams(V_ST + 4 * ti, V_RS + 2 * ti, V_EXT + 4 * ti, 28 + 2 * ti)
           + [f"v_rcp_f32 v{V_IRS + 2*ti}, v{V_RS + 2*ti}"] for ti in range(2)]
    merged = [x for pair in zip(*stl) for x in pair]
    for n, ins in enumerate(merged):
        side.setdefault(12 + (n * 6) // len(merged), []).append(lambda ins=ins: a(ins))
    wreg = lambda s, t: ar(A_WW + (s * 4 + t) * 4)

    def epilogue_stream(u, ti, R, packed):
        b = V_ACC + (u % 2) * 32 + ti * 16
        rs, irs = V_RS + 2 * ti, V_IRS + 2 * ti
        L = []
        outs = []
        for p in range(2):
            for h in range(2):
                g_, u_ = b + 8 * p + 2 * h, b + 8 * p + 4 + 2 * h
                t_ = R + 2 * (2 * p + h)
                if packed:
                    G, U, T = (f"v[{r}:{r+1}]" for r in (g_, u_, t_))
                    L += [f"v_pk_mul_f32 {G}, {G}, v[{rs}:{rs+1}] op_sel_hi:[1,0]",
                          f"v_pk_mul_f32 {T}, {G}, {G}",
                          f"v_pk_fma_f32 {T}, {T}, {sp(S_C1)}, v[{V_C0}:{V_C0+1}]",
                          f"v_pk_mul_f32 {T}, {G}, {T}",
                          f"v_exp_f32 v{t_}, v{t_}", f"v_exp_f32 v{t_+1}, v{t_+1}",
                          f"v_pk_mul_f32 {U}, {U}, {G}",
                          f"v_pk_fma_f32 {T}, {T}, v[{irs}:{irs+1}], v[{irs}:{irs+1}] op_sel_hi:[1,0,0]",
                          f"v_rcp_f32 v{t_}, v{t_}", f"v_rcp_f32 v{t_+1}, v{t_+1}",
                          f"v_pk_mul_f32 {U}, {U}, {T}"]
                else:
                    for k in range(2):
                        G, U, T = g_ + k, u_ + k, t_ + k
                        L += [f"v_mul_f32 v{G}, v{G}, v{rs}",
                              f"v_mul_f32 v{T}, v{G}, v{G}",
                              f"v_fma_f32 v{T}, v{T}, s{S_C1}, v{V_C0}",
                              f"v_mul_f32 v{T}, v{G}, v{T}",
                              f"v_exp_f32 v{T}, v{T}",
                              f"v_mul_f32 v{U}, v{U}, v{G}",
                              f"v_fma_f32 v{T}, v{T}, v{irs}, v{irs}",
                              f"v_rcp_f32 v{T}, v{T}"]
                    for k in range(2):
                        L.append(f"v_mul_f32 v{u_+k}, v{u_+k}, v{t_+k}")
                outs.append(u_)
        O = R + 8
        for n, r in enumerate(outs):
            L.append(f"v_cvt_pk_bf16_f32 v{O+n}, v{r}, v{r+1}")
        L.append(f"global_store_dwordx4 v{V_L16}, {vr(O)}, {sp(S_P1 if ti == 0 else S_P2)} offset:{u*1024}")
        return L

    def merge(l0, l1):
        out = []
        for x, y in zip(l0, l1):
            out += [x, y]
        return out

    steps = []
    for u in range(3):
        acc = lambda ti, t, u=u: vr(V_ACC + (u % 2) * 32 + ti * 16 + 4 * t)
        for ks in range(NKS):
            i = u * NKS + ks
            B = [xreg(0, ks), xreg(1, ks)] if ks < 20 else [vr(V_EXT), vr(V_EXT + 4)]
            steps.append(dict(g=list(range(292 + 4 * i, 292 + 4 * i + 4)), B=B, acc=acc, zero=(ks == 0)))
        if u > 0 and "noshadow" not in EXP:
            ep = merge(epilogue_stream(u - 1, 0, 112, False), epilogue_stream(u - 1, 1, 136, False))
            for n, ins in enumerate(ep):
                side.setdefault(u * NKS + 1 + (n * 19) // len(ep), []).append(lambda ins=ins: a(ins))
    if "t4" in TCH:
        side.setdefault(TSTEP, []).append(
            lambda: queue_touches(a, touch_items(a, S_CT, 240 * KB, WS.WD, 0, 240, 4, -1, S_TB)))
    start_hook, hooks = pass_hooks(S, 292, 4, 63, [5, 12, 19, 26, 33, 40, 47, 54])
    marks = {21: lambda: stamp(a, st, 26), 42: lambda: stamp(a, st, 28)} if st else None
    if st and "k3hooks" in EXP:
        for h, (i0, i1) in ((26, (13, 27)), (33, (29, 31)), (40, (17, 18))):
            def wrapped(f=hooks[h], i0=i0, i1=i1):
                stamp(a, st, i0)
                f()
                stamp(a, st, i1)
            hooks[h] = wrapped
    gemm_pass(a, steps, wreg, start_hook, hooks, side, marks)
    S.point(544, 544, force=True)
    stamp(a, st, 30)
    a.bg_pace = 64
    interleave(a, [epilogue_stream(2, 0, 112, True), epilogue_stream(2, 1, 136, True)])
    stamp(a, st, 12)


def main(a, stop=None, stamps=False):
    st = stamps
    for k in range(5):
        a(f"v_add_u32 v{V_O8K+k}, {8192*k}, v{V_L16}")
    a(f"v_add_u32 v{V_L16H}, 65536, v{V_L16}")
    a(f"v_lshlrev_b32 v{V_L128}, 7, v{V_LANE}")
    a(f"s_mov_b32 s{S_L2E}, {f2u(LOG2E)}")
    a(f"s_mov_b32 s{S_L2E+1}, {f2u(LOG2E)}")
    a(f"s_mov_b32 s{S_EPOCH}, 0")
    a(f"s_mov_b32 s{S_LAYER}, 0")
    a(f"s_lshr_b32 s{S_TH}, s{S_MEM}, 3")
    a(f"s_and_b32 s{S_CT}, s{S_MEM}, 7")
    a(f"s_and_b32 s{S_T0}, s{S_RB}, 1")
    a(f"s_lshl_b32 s{S_T1}, s{S_T0}, 2")
    a(f"s_add_u32 s{S_T1}, s{S_T1}, s{S_WAVE}")
    a(f"s_lshl_b32 s{S_SH2}, s{S_T1}, 13")
    a(f"s_lshl_b32 s{S_T0}, s{S_T0}, 1")
    a(f"s_add_u32 s{S_T0}, s{S_T0}, s{S_TH}")
    a(f"s_lshl_b32 s{S_T0}, s{S_T0}, 2")
    a(f"s_add_u32 s{S_T0}, s{S_T0}, s{S_WAVE}")
    a(f"s_lshl_b32 s{S_SH4}, s{S_T0}, 13")
    for name, reg, stride, base in (("W1", S_MEM, NKS * 6 * KB, WS.WQKV1), ("Q2", S_MEM, NKS * 3 * KB, WS.WQKV2),
                                    ("WO", S_CT, 100 * KB, WS.WO), ("WGU", S_MEM, 3 * NKS * 4 * KB, WS.WGU),
                                    ("WD", S_CT, 240 * KB, WS.WD)):
        a(f"s_mul_i32 s{S_T0}, s{reg}, {stride}")
        a(f"s_add_u32 s{S_T0}, s{S_T0}, {base}")
        add64(a, S_BW[name], S_WS, f"s{S_T0}")
    S = Stream(a)
    S.start()
    top = "L_layer"
    a.label(top, drained=False)
    k1(a, st, S)
    if stop == "k1":
        a.bg_flush()
        return
    group_barrier(a, "gb1")
    k2(a, st, S)
    if stop == "k2":
        a.bg_flush()
        return
    group_barrier(a, "gb2")
    k3(a, st, S)
    if stop == "k3":
        a.bg_flush()
        return
    group_barrier(a, "gb3")
    import copy
    last = a.newlabel("last")
    held, a.bg = a.bg, []
    a(f"s_cmp_eq_u32 s{S_LAYER}, 1")
    a.branch(f"s_cbranch_scc1 {last}")
    state = (S.issued, S.ready, dict(S.segs), [dict(e) for e in held])
    a.bg = list(held)
    k4(a, st, S, False)
    stamp_flush_hold(a, st)
    group_barrier(a, "gb4")
    a.bg_flush()
    a(f"s_mov_b32 s{S_LAYER}, 1")
    a.branch(f"s_branch {top}", drained=False)
    a.vm, a.lg = [], []
    a.label(last)
    S.issued, S.ready, S.segs = state[0], state[1], state[2]
    a.bg = held
    k4(a, st, S, True)
    a.bg_flush()
    stamp_flush(a, st)
```

```python
from layout import WS, KB, NKS

S_X, S_WQKV, S_WPHI, S_WO, S_WG, S_WU, S_WD, S_OUT, S_DBG, S_WS = 4, 6, 8, 10, 12, 14, 16, 18, 20, 22
S_WAVE, S_RB, S_MEM, S_SLOW, S_LAYER, S_EPOCH = 24, 25, 26, 27, 28, 29
V_TID, V_LANE, V_L16, V_J, V_G = 0, 1, 2, 3, 4

LDS_A, LDS_B = 0, 98304


def sp(n):
    return f"s[{n}:{n+1}]"


def vr(n, k=4):
    return f"v[{n}:{n+k-1}]"


def ar(n, k=4):
    return f"a[{n}:{n+k-1}]"


def add64(a, dst, src, off):
    a(f"s_add_u32 s{dst}, s{src}, {off}")
    a(f"s_addc_u32 s{dst+1}, s{src+1}, 0")


def prologue(a, done_label):
    a("s_cmp_ge_u32 s2, 256")
    a.branch(f"s_cbranch_scc1 {done_label}")
    a("s_load_dwordx4 s[4:7], s[0:1], 0")
    a("s_load_dwordx4 s[8:11], s[0:1], 16")
    a("s_load_dwordx4 s[12:15], s[0:1], 40")
    a("s_load_dwordx4 s[16:19], s[0:1], 56")
    a("s_load_dwordx4 s[20:23], s[0:1], 72")
    a(f"v_lshrrev_b32 v5, 6, v{V_TID}")
    a(f"v_and_b32 v{V_LANE}, 63, v{V_TID}")
    a(f"v_readfirstlane_b32 s{S_WAVE}, v5")
    a(f"v_lshlrev_b32 v{V_L16}, 4, v{V_LANE}")
    a(f"v_and_b32 v{V_J}, 15, v{V_LANE}")
    a(f"v_lshrrev_b32 v{V_G}, 4, v{V_LANE}")
    a.wait_lg(0)


SB_SRC, SB_STRIDE, SB_CPR, SB_MAGIC, SB_NCH, SB_TYPE, SB_P0, SB_P1, SB_S = 30, 32, 33, 34, 35, 36, 37, 38, 39
SA_SRC, SA_STRIDE, SA_CPR, SA_MAGIC, SA_NCH = 40, 42, 43, 44, 45
S_T0, S_T1, S_T2, S_T3, S_T4, S_T5 = 46, 47, 48, 49, 50, 51
S_DST, S_DSTR, S_IT = 52, 54, 55
S_EXT = 56
S_AF = 58
S_LB = 59
V_RANK, V_ZERO, V_DUM = 120, 121, 122


def decode_b(a):
    lw_o, l_d, l_done = a.newlabel("b_wo"), a.newlabel("b_wd"), a.newlabel("b_dec")
    a(f"s_min_u32 s{S_T0}, s2, 223")
    a(f"s_cmp_ge_u32 s{S_T0}, 160")
    a.branch(f"s_cbranch_scc1 {l_d}")
    a(f"s_cmp_ge_u32 s{S_T0}, 128")
    a.branch(f"s_cbranch_scc1 {lw_o}")
    a(f"s_lshr_b32 s{SB_S}, s{S_T0}, 6")
    a(f"s_lshr_b32 s{SB_P0}, s{S_T0}, 2")
    a(f"s_and_b32 s{SB_P0}, s{SB_P0}, 15")
    a(f"s_and_b32 s{SB_P1}, s{S_T0}, 3")
    a(f"s_cmp_eq_u32 s{SB_S}, 0")
    a(f"s_cselect_b32 s{S_T2}, s{S_WG}, s{S_WU}")
    a(f"s_cselect_b32 s{S_T3}, s{S_WG+1}, s{S_WU+1}")
    a(f"s_mul_i32 s{S_T1}, s{SB_P1}, {160*1536*2}")
    a(f"s_mul_i32 s{S_T4}, s{SB_P0}, {96*2}")
    a(f"s_add_u32 s{S_T1}, s{S_T1}, s{S_T4}")
    add64(a, SB_SRC, S_T2, f"s{S_T1}")
    a(f"s_mov_b32 s{SB_STRIDE}, 3072")
    a(f"s_mov_b32 s{SB_CPR}, 12")
    a(f"s_mov_b32 s{SB_MAGIC}, 5462")
    a(f"s_mov_b32 s{SB_NCH}, 1919")
    a(f"s_mov_b32 s{SB_TYPE}, 0")
    a.branch(f"s_branch {l_done}")
    a.label(lw_o)
    a(f"s_sub_u32 s{S_T0}, s{S_T0}, 128")
    a(f"s_lshr_b32 s{SB_P0}, s{S_T0}, 2")
    a(f"s_and_b32 s{SB_P1}, s{S_T0}, 3")
    a(f"s_mul_i32 s{S_T1}, s{SB_P1}, {160*640*2}")
    a(f"s_mul_i32 s{S_T4}, s{SB_P0}, 160")
    a(f"s_add_u32 s{S_T1}, s{S_T1}, s{S_T4}")
    add64(a, SB_SRC, S_WO, f"s{S_T1}")
    a(f"s_mov_b32 s{SB_STRIDE}, 1280")
    a(f"s_mov_b32 s{SB_CPR}, 10")
    a(f"s_mov_b32 s{SB_MAGIC}, 6554")
    a(f"s_mov_b32 s{SB_NCH}, 1599")
    a(f"s_mov_b32 s{SB_TYPE}, 1")
    a(f"s_mov_b32 s{SB_S}, 0")
    a.branch(f"s_branch {l_done}")
    a.label(l_d)
    a(f"s_sub_u32 s{S_T0}, s{S_T0}, 160")
    a(f"s_lshr_b32 s{SB_P0}, s{S_T0}, 3")
    a(f"s_and_b32 s{SB_P1}, s{S_T0}, 7")
    a(f"s_mul_i32 s{S_T1}, s{SB_P1}, {192*640*2}")
    a(f"s_mul_i32 s{S_T4}, s{SB_P0}, 160")
    a(f"s_add_u32 s{S_T1}, s{S_T1}, s{S_T4}")
    add64(a, SB_SRC, S_WD, f"s{S_T1}")
    a(f"s_mov_b32 s{SB_STRIDE}, 1280")
    a(f"s_mov_b32 s{SB_CPR}, 10")
    a(f"s_mov_b32 s{SB_MAGIC}, 6554")
    a(f"s_mov_b32 s{SB_NCH}, 1919")
    a(f"s_mov_b32 s{SB_TYPE}, 2")
    a(f"s_mov_b32 s{SB_S}, 0")
    a.label(l_done)


def stage_block(a, src, stride, cpr, magic, nch, lds_base, three=False):
    cnt = 10 if three else 8
    if three:
        a(f"s_sub_u32 s{S_T2}, s{S_WAVE}, 1")
        a(f"s_mul_i32 s{S_T0}, s{S_T2}, {64*cnt}")
        a(f"s_mul_i32 s{S_T1}, s{S_T2}, {1024*cnt}")
    else:
        a(f"s_lshl_b32 s{S_T0}, s{S_WAVE}, 9")
        a(f"s_lshl_b32 s{S_T1}, s{S_WAVE}, 13")
    a(f"v_add_u32 v10, s{S_T0}, v{V_LANE}")
    a(f"s_add_u32 s{S_T1}, s{S_T1}, {lds_base}")
    for n in range(cnt):
        a(f"v_add_u32 v11, {64*n}, v10")
        a(f"v_min_u32 v11, s{nch}, v11")
        a(f"v_mul_u32_u24 v12, s{magic}, v11")
        a(f"v_lshrrev_b32 v12, 16, v12")
        a(f"v_mul_u32_u24 v13, s{cpr}, v12")
        a(f"v_sub_u32 v13, v11, v13")
        a(f"v_lshlrev_b32 v13, 4, v13")
        a(f"v_mad_u32_u24 v{14 + n % 8}, v12, s{stride}, v13")
        a(f"s_add_u32 m0, s{S_T1}, {1024*n}")
        a(f"global_load_lds_dwordx4 v{14 + n % 8}, {sp(src)}")


V_ONES = 24
V_ADDR, V_ADDR2, V_MASK, V_MASK2 = 28, 29, 30, 31
V_TMP = 32
V_FR = 80
V_CS = 108


def gather_tile(a, nks, offs, mask=None, cs=False):
    for ksl in range(nks):
        for e in range(8):
            av, imm = offs(ksl, e)
            op = "ds_read_u16_d16_hi" if e & 1 else "ds_read_u16"
            a(f"{op} v{V_TMP + 8*ksl + e}, v{av} offset:{imm}")
    for ksl in range(nks):
        for q in range(4):
            r = V_FR + 4 * ksl + q
            a(f"v_or_b32 v{r}, v{V_TMP + 8*ksl + 2*q}, v{V_TMP + 8*ksl + 2*q + 1}")
            if mask is not None:
                a(f"v_and_b32 v{r}, v{mask(q)}, v{r}")
    if cs:
        for ksl in range(nks):
            c = "0" if ksl == 0 else vr(V_CS)
            a(f"v_mfma_f32_16x16x32_bf16 {vr(V_CS)}, {vr(V_ONES)}, {vr(V_FR + 4*ksl)}, {c}")


def store_ext(a):
    a(f"v_cvt_pk_bf16_f32 v{V_TMP}, v{V_CS}, v{V_CS}")
    a(f"v_and_b32 v{V_TMP+4}, 0xffff0000, v{V_TMP}")
    a(f"v_sub_f32 v{V_TMP+4}, v{V_CS}, v{V_TMP+4}")
    a(f"v_mov_b32 v{V_TMP+2}, 0")
    a(f"v_mov_b32 v{V_TMP+3}, 0")
    a(f"v_cvt_pk_bf16_f32 v{V_TMP+1}, v{V_TMP+4}, v{V_TMP+2}")
    a("s_mov_b64 exec, 0xffff")
    a(f"global_store_dwordx4 v{V_L16}, {vr(V_TMP)}, {sp(S_EXT)} sc1")
    a("s_mov_b64 exec, -1")


def tile_loop(a, ntiles, body):
    end = a.newlabel("tile_end")
    a(f"s_mov_b32 s{S_IT}, s{S_WAVE}")
    body()
    a(f"s_add_u32 s{S_IT}, s{S_WAVE}, 4")
    a(f"s_cmp_ge_u32 s{S_IT}, {ntiles}")
    a.wait_lg(0)
    a.branch(f"s_cbranch_scc1 {end}", drained=False)
    body()
    a.wait_lg(0)
    a.label(end, drained=False)


def half_head_lane(a):
    a(f"v_lshrrev_b32 v5, 2, v{V_J}")
    a(f"v_and_b32 v6, 3, v{V_J}")


def a_wqkv(a, stamp=lambda i: None):
    ty, cc, kq = 60, 61, 62
    a(f"s_lshr_b32 s{ty}, s2, 5")
    a(f"s_lshr_b32 s{cc}, s2, 2")
    a(f"s_and_b32 s{cc}, s{cc}, 7")
    a(f"s_and_b32 s{kq}, s2, 3")
    a(f"s_mul_i32 s{S_T0}, s{kq}, {160*1920*2}")
    a(f"s_mul_i32 s{S_T1}, s{ty}, 1280")
    a(f"s_add_u32 s{S_T0}, s{S_T0}, s{S_T1}")
    a(f"s_mul_i32 s{S_T1}, s{cc}, 160")
    a(f"s_add_u32 s{S_T0}, s{S_T0}, s{S_T1}")
    add64(a, SA_SRC, S_WQKV, f"s{S_T0}")
    a(f"s_mov_b32 s{SA_STRIDE}, 3840")
    a(f"s_mov_b32 s{SA_CPR}, 10")
    a(f"s_mov_b32 s{SA_MAGIC}, 6554")
    a(f"s_mov_b32 s{SA_NCH}, 1599")
    stage_block(a, SA_SRC, SA_STRIDE, SA_CPR, SA_MAGIC, SA_NCH, LDS_A)
    tok = a.vm_token()
    rank_request(a)
    for q in range(4):
        a(f"v_mov_b32 v{V_ONES+q}, 0x3f803f80")
    a.wait_token(tok)
    a.barrier()
    zero_check_load(a)
    stamp(17)

    def body():
        cl, t = 63, 64
        a(f"s_cmp_ge_u32 s{S_IT}, 3")
        a(f"s_cselect_b32 s{cl}, 1, 0")
        a(f"s_mul_i32 s{t}, s{cl}, 3")
        a(f"s_sub_u32 s{t}, s{S_IT}, s{t}")
        half_head_lane(a)
        a("v_lshrrev_b32 v7, 1, v5")
        a("v_mul_u32_u24 v7, 20, v7")
        a("v_and_b32 v8, 1, v5")
        a("v_mul_u32_u24 v8, 10, v8")
        a("v_add3_u32 v7, v7, v8, v6")
        a(f"s_mul_i32 s{S_T0}, s{cl}, 40")
        a(f"s_lshl_b32 s{S_T1}, s{t}, 2")
        a(f"s_add_u32 s{S_T0}, s{S_T0}, s{S_T1}")
        a(f"v_add_u32 v7, s{S_T0}, v7")
        a("v_lshlrev_b32 v7, 1, v7")
        a(f"v_mul_u32_u24 v8, {8*160}, v{V_G}")
        a(f"v_add_u32 v{V_ADDR}, v7, v8")
        a(f"v_add_u32 v9, s{S_T1}, v6")
        a("v_cmp_gt_u32 vcc, 10, v9")
        a(f"v_cndmask_b32 v{V_MASK}, 0, -1, vcc")
        gather_tile(a, 5, lambda ksl, e: (V_ADDR, LDS_A + (32*ksl + e) * 160), mask=lambda q: V_MASK, cs=True)
        c = 65
        a(f"s_lshl_b32 s{c}, s{cc}, 1")
        a(f"s_add_u32 s{c}, s{c}, s{cl}")
        a(f"s_cmp_eq_u32 s{ty}, 0")
        a(f"s_cselect_b32 s{S_DSTR}, 3, 6")
        a(f"s_mov_b32 s{S_T2}, {WS.WQKV1}")
        a(f"s_cselect_b32 s{S_T2}, {WS.WQKV2}, s{S_T2}")
        a(f"s_lshl_b32 s{S_DSTR}, s{S_DSTR}, 10")
        a(f"s_mul_i32 s{S_T3}, s{c}, {NKS}")
        a(f"s_mul_i32 s{S_T3}, s{S_T3}, s{S_DSTR}")
        a(f"s_add_u32 s{S_T2}, s{S_T2}, s{S_T3}")
        a(f"s_cmp_eq_u32 s{ty}, 2")
        a(f"s_cselect_b32 s{S_T3}, 3, 0")
        a(f"s_add_u32 s{S_T3}, s{S_T3}, s{t}")
        a(f"s_lshl_b32 s{S_T3}, s{S_T3}, 10")
        a(f"s_add_u32 s{S_T2}, s{S_T2}, s{S_T3}")
        a(f"s_mul_i32 s{S_T3}, s{S_DSTR}, 20")
        a(f"s_add_u32 s{S_T3}, s{S_T3}, s{S_T2}")
        a(f"s_lshl_b32 s{S_T4}, s{kq}, 8")
        a(f"s_add_u32 s{S_T3}, s{S_T3}, s{S_T4}")
        add64(a, S_EXT, S_WS, f"s{S_T3}")
        a(f"s_mul_i32 s{S_T3}, s{kq}, 5")
        a(f"s_mul_i32 s{S_T3}, s{S_T3}, s{S_DSTR}")
        a(f"s_add_u32 s{S_T2}, s{S_T2}, s{S_T3}")
        add64(a, S_DST, S_WS, f"s{S_T2}")
        for ksl in range(5):
            a(f"global_store_dwordx4 v{V_L16}, {vr(V_FR + 4*ksl)}, {sp(S_DST)} sc1")
            if ksl < 4:
                add64(a, S_DST, S_DST, f"s{S_DSTR}")
        store_ext(a)
    tile_loop(a, 6, body)
    stamp(19)
    a(f"s_lshl_b32 s{S_AF}, s{cc}, 7")
    a(f"s_lshl_b32 s{S_T0}, s{ty}, 2")
    a(f"s_add_u32 s{S_T0}, s{S_T0}, s{kq}")
    a(f"s_lshl_b32 s{S_T0}, s{S_T0}, 2")
    a(f"s_add_u32 s{S_AF}, s{S_AF}, s{S_T0}")
    a(f"s_add_u32 s{S_AF}, s{S_AF}, {WS.AFLAG + 2048}")


def a_x0(a):
    tt = 60
    a(f"s_sub_u32 s{tt}, s2, 96")
    a(f"s_mul_i32 s{S_T0}, s{tt}, {16*1280}")
    a(f"s_mul_i32 s{S_T1}, s{S_WAVE}, {5*64}")
    a(f"s_add_u32 s{S_T0}, s{S_T0}, s{S_T1}")
    add64(a, SA_SRC, S_X, f"s{S_T0}")
    a(f"v_mul_u32_u24 v5, 1280, v{V_J}")
    a(f"v_lshlrev_b32 v6, 4, v{V_G}")
    a("v_add_u32 v5, v5, v6")
    for n in range(5):
        a(f"global_load_dwordx4 {vr(V_FR + 4*n)}, v5, {sp(SA_SRC)} offset:{64*n}")
    tok = a.vm_token()
    rank_request(a)
    a(f"s_mul_i32 s{S_T0}, s{tt}, {20*KB}")
    a(f"s_mul_i32 s{S_T1}, s{S_WAVE}, {5*KB}")
    a(f"s_add_u32 s{S_T0}, s{S_T0}, s{S_T1}")
    a(f"s_add_u32 s{S_T0}, s{S_T0}, {WS.XF0}")
    add64(a, S_DST, S_WS, f"s{S_T0}")
    a.wait_token(tok)
    zero_check_load(a)
    for n in range(5):
        if n == 4:
            add64(a, S_DST, S_DST, 4096)
        a(f"global_store_dwordx4 v{V_L16}, {vr(V_FR + 4*n)}, {sp(S_DST)} offset:{(n % 4)*1024} sc1")
    s_, ss = 40, 41
    a(f"v_mov_b32 v{s_}, 0")
    a(f"v_mov_b32 v{ss}, 0")
    for n in range(20):
        r = V_FR + n
        a(f"v_lshlrev_b32 v42, 16, v{r}")
        a(f"v_and_b32 v43, 0xffff0000, v{r}")
        a(f"v_add_f32 v{s_}, v{s_}, v42")
        a(f"v_fmac_f32 v{ss}, v42, v42")
        a(f"v_add_f32 v{s_}, v{s_}, v43")
        a(f"v_fmac_f32 v{ss}, v43, v43")
    reduce_groups(a, [s_, ss], 44)
    a(f"s_lshl_b32 s{S_T0}, s{tt}, 10")
    a(f"s_add_u32 s{S_T0}, s{S_T0}, {WS.ST0}")
    add64(a, S_DST, S_WS, f"s{S_T0}")
    a(f"s_lshr_b32 s{S_T1}, s{S_WAVE}, 1")
    a(f"s_lshl_b32 s{S_T1}, s{S_T1}, 8")
    a(f"s_and_b32 s{S_T2}, s{S_WAVE}, 1")
    a(f"s_lshl_b32 s{S_T2}, s{S_T2}, 3")
    a(f"s_add_u32 s{S_T1}, s{S_T1}, s{S_T2}")
    a(f"v_add_u32 v46, s{S_T1}, v{V_L16}")
    a("s_mov_b64 exec, 0xffff")
    a(f"global_store_dwordx2 v46, v[{s_}:{ss}], {sp(S_DST)} sc1")
    a("s_mov_b64 exec, -1")
    a("v_mov_b32 v48, 0")
    a("v_mov_b32 v49, 0")
    a(f"s_lshl_b32 s{S_T1}, s{S_WAVE}, 7")
    a(f"v_lshlrev_b32 v47, 3, v{V_LANE}")
    a(f"v_add_u32 v47, s{S_T1}, v47")
    a("s_mov_b64 exec, 0xffff")
    a(f"global_store_dwordx2 v47, v[48:49], {sp(S_DST)} offset:512 sc1")
    a("s_mov_b64 exec, -1")
    a(f"s_lshr_b32 s{S_AF}, s{tt}, 3")
    a(f"s_lshl_b32 s{S_AF}, s{S_AF}, 7")
    a(f"s_and_b32 s{S_T0}, s{tt}, 7")
    a(f"s_lshl_b32 s{S_T0}, s{S_T0}, 2")
    a(f"s_add_u32 s{S_AF}, s{S_AF}, s{S_T0}")
    a(f"s_add_u32 s{S_AF}, s{S_AF}, {WS.AFLAG}")


def reduce_groups(a, regs, tmp):
    for i, r in enumerate(regs):
        a(f"v_mov_b32 v{tmp+i}, v{r}")
    for i, r in enumerate(regs):
        a(f"v_permlane16_swap_b32 v{r}, v{tmp+i}")
    for i, r in enumerate(regs):
        a(f"v_add_f32 v{r}, v{r}, v{tmp+i}")
    for i, r in enumerate(regs):
        a(f"v_mov_b32 v{tmp+i}, v{r}")
    for i, r in enumerate(regs):
        a(f"v_permlane32_swap_b32 v{r}, v{tmp+i}")
    for i, r in enumerate(regs):
        a(f"v_add_f32 v{r}, v{r}, v{tmp+i}")


def a_wphi(a):
    c = 60
    a(f"s_sub_u32 s{c}, s2, 224")
    a(f"s_mul_i32 s{S_T0}, s{c}, 1600")
    add64(a, SA_SRC, S_WPHI, f"s{S_T0}")
    a(f"s_mov_b32 s{SA_STRIDE}, 0")
    a(f"s_mov_b32 s{SA_CPR}, 128")
    a(f"s_mov_b32 s{SA_MAGIC}, 0")
    a(f"s_mov_b32 s{SA_NCH}, 99")
    stage_block(a, SA_SRC, SA_STRIDE, SA_CPR, SA_MAGIC, SA_NCH, LDS_A)
    tok = a.vm_token()
    rank_request(a)
    a.wait_token(tok)
    a.barrier()
    zero_check_load(a)

    def body():
        kap, t = 63, 64
        a(f"s_cmp_ge_u32 s{S_IT}, 3")
        a(f"s_cselect_b32 s{kap}, 1, 0")
        a(f"s_mul_i32 s{t}, s{kap}, 3")
        a(f"s_sub_u32 s{t}, s{S_IT}, s{t}")
        half_head_lane(a)
        a("v_and_b32 v7, 1, v5")
        a("v_mul_u32_u24 v7, 10, v7")
        a(f"s_lshl_b32 s{S_T1}, s{t}, 2")
        a(f"v_add_u32 v9, s{S_T1}, v6")
        a("v_add_u32 v7, v7, v9")
        a(f"v_and_b32 v8, 1, v{V_G}")
        a("v_mul_u32_u24 v8, 200, v8")
        a(f"s_mul_i32 s{S_T2}, s{kap}, 160")
        a(f"v_add_u32 v8, s{S_T2}, v8")
        a(f"v_lshrrev_b32 v10, 1, v{V_G}")
        a("v_mul_u32_u24 v11, 400, v10")
        a("v_add3_u32 v7, v7, v8, v11")
        a(f"v_lshlrev_b32 v{V_ADDR}, 1, v7")
        a("v_lshrrev_b32 v5, 1, v5")
        a("v_cmp_eq_u32 vcc, v5, v10")
        a(f"v_cndmask_b32 v{V_MASK}, 0, -1, vcc")
        a("v_cmp_gt_u32 vcc, 10, v9")
        a(f"v_cndmask_b32 v{V_MASK}, 0, v{V_MASK}, vcc")
        a(f"s_cmp_eq_u32 s{kap}, 0")
        a(f"s_cselect_b32 s{S_T3}, -1, 0")
        a(f"v_and_b32 v{V_MASK2}, s{S_T3}, v{V_MASK}")
        gather_tile(a, 1, lambda ksl, e: (V_ADDR, LDS_A + 40 * e), mask=lambda q: V_MASK if q == 0 else V_MASK2)
        a(f"s_mul_i32 s{S_T2}, s{c}, 6")
        a(f"s_add_u32 s{S_T2}, s{S_T2}, s{S_IT}")
        a(f"s_lshl_b32 s{S_T2}, s{S_T2}, 10")
        a(f"s_add_u32 s{S_T2}, s{S_T2}, {WS.WPHI}")
        add64(a, S_DST, S_WS, f"s{S_T2}")
        a(f"global_store_dwordx4 v{V_L16}, {vr(V_FR)}, {sp(S_DST)} sc1")
    tile_loop(a, 6, body)
    a(f"s_lshr_b32 s{S_AF}, s{c}, 1")
    a(f"s_lshl_b32 s{S_AF}, s{S_AF}, 7")
    a(f"s_and_b32 s{S_T0}, s{c}, 1")
    a(f"s_add_u32 s{S_T0}, s{S_T0}, 12")
    a(f"s_lshl_b32 s{S_T0}, s{S_T0}, 2")
    a(f"s_add_u32 s{S_AF}, s{S_AF}, s{S_T0}")
    a(f"s_add_u32 s{S_AF}, s{S_AF}, {WS.AFLAG + 2048}")


def a_misc(a):
    skip = a.newlabel("zero_skip")
    a(f"s_mov_b32 s{S_AF}, 0")
    rank_request(a)
    a.drain()
    a("s_cmp_lg_u32 s2, 240")
    a.branch(f"s_cbranch_scc1 {skip}")
    add64(a, S_DST, S_WS, WS.FLAGS)
    for q in range(4):
        a(f"v_mov_b32 v{40+q}, 0")
    a(f"v_lshlrev_b32 v5, 4, v{V_TID}")
    for n in range(WS.FLAGS_ZERO // 4096):
        a(f"global_store_dwordx4 v5, v[40:43], {sp(S_DST)} sc1")
        a("v_add_u32 v5, 4096, v5")
    a.drain()
    a.barrier()
    a("v_mov_b32 v5, 128")
    a("v_mov_b32 v6, 1")
    a(f"s_cmp_eq_u32 s{S_WAVE}, 0")
    a("s_cselect_b64 exec, 1, 0")
    a(f"global_store_dword v5, v6, {sp(S_DBG)} sc1")
    a("s_mov_b64 exec, -1")
    a.drain()
    a.label(skip)


def out_tile_col(a, ct_s, t_s):
    half_head_lane(a)
    a(f"s_and_b32 s{S_T0}, s{ct_s}, 1")
    a(f"s_lshl_b32 s{S_T1}, s{S_T0}, 4")
    a(f"s_lshr_b32 s{S_T2}, s{t_s}, 1")
    a(f"s_lshl_b32 s{S_T2}, s{S_T2}, 5")
    a(f"s_add_u32 s{S_T1}, s{S_T1}, s{S_T2}")
    a(f"s_and_b32 s{S_T2}, s{t_s}, 1")
    a(f"s_lshl_b32 s{S_T2}, s{S_T2}, 2")
    a(f"s_add_u32 s{S_T1}, s{S_T1}, s{S_T2}")
    a("v_lshlrev_b32 v7, 3, v5")
    a("v_add3_u32 v7, v7, v6, s%d" % S_T1)
    a(f"s_cmp_eq_u32 s{S_T0}, 0")
    a(f"s_cselect_b32 s{S_T2}, 64, 0")
    a(f"v_add_u32 v8, s{S_T2}, v{V_J}")
    a(f"s_cmp_eq_u32 s{t_s}, 4")
    a("s_cselect_b64 vcc, -1, 0")
    a("v_cndmask_b32 v7, v7, v8, vcc")


def b_wgu(a):
    def body():
        half_head_lane(a)
        a(f"s_lshr_b32 s{S_T0}, s{S_IT}, 1")
        a(f"s_lshl_b32 s{S_T1}, s{S_T0}, 5")
        a(f"s_and_b32 s{S_T2}, s{S_IT}, 1")
        a(f"s_lshl_b32 s{S_T3}, s{S_T2}, 2")
        a(f"s_add_u32 s{S_T1}, s{S_T1}, s{S_T3}")
        a("v_lshlrev_b32 v7, 3, v5")
        a("v_add3_u32 v7, v7, v6, s%d" % S_T1)
        a("v_lshlrev_b32 v7, 1, v7")
        a(f"v_mul_u32_u24 v8, {8*192}, v{V_G}")
        a(f"v_add3_u32 v{V_ADDR}, v7, v8, s{S_LB}")
        gather_tile(a, 5, lambda ksl, e: (V_ADDR, (32*ksl + e) * 192), cs=True)
        a(f"s_mul_i32 s{S_T3}, s{SB_P0}, 3")
        a(f"s_add_u32 s{S_T3}, s{S_T3}, s{S_T0}")
        a(f"s_mul_i32 s{S_T3}, s{S_T3}, {NKS*4*KB}")
        a(f"s_lshl_b32 s{S_T2}, s{S_T2}, 1")
        a(f"s_add_u32 s{S_T2}, s{S_T2}, s{SB_S}")
        a(f"s_lshl_b32 s{S_T2}, s{S_T2}, 10")
        a(f"s_add_u32 s{S_T3}, s{S_T3}, s{S_T2}")
        a(f"s_add_u32 s{S_T3}, s{S_T3}, {WS.WGU}")
        a(f"s_lshl_b32 s{S_T4}, s{SB_P1}, 8")
        a(f"s_add_u32 s{S_T4}, s{S_T4}, s{S_T3}")
        a(f"s_add_u32 s{S_T4}, s{S_T4}, {20*4*KB}")
        add64(a, S_EXT, S_WS, f"s{S_T4}")
        a(f"s_mul_i32 s{S_T4}, s{SB_P1}, {5*4*KB}")
        a(f"s_add_u32 s{S_T3}, s{S_T3}, s{S_T4}")
        add64(a, S_DST, S_WS, f"s{S_T3}")
        for ksl in range(5):
            a(f"global_store_dwordx4 v{V_L16}, {vr(V_FR + 4*ksl)}, {sp(S_DST)} sc1")
            if ksl < 4:
                add64(a, S_DST, S_DST, 4 * KB)
        store_ext(a)
    for q in range(4):
        a(f"v_mov_b32 v{V_ONES+q}, 0x3f803f80")
    tile_loop(a, 6, body)


def b_wo(a):
    def body():
        out_tile_col(a, SB_P0, S_IT)
        a("v_lshlrev_b32 v7, 1, v7")
        a(f"v_lshrrev_b32 v8, 1, v{V_G}")
        a("v_mul_u32_u24 v8, 10, v8")
        a(f"v_and_b32 v9, 1, v{V_G}")
        a("v_lshlrev_b32 v10, 2, v9")
        a("v_add_u32 v10, v10, v8")
        a("v_add3_u32 v11, v8, v9, 8")
        a("v_mul_u32_u24 v10, 160, v10")
        a("v_mul_u32_u24 v11, 160, v11")
        a(f"v_add3_u32 v{V_ADDR}, v7, v10, s{S_LB}")
        a(f"v_add3_u32 v{V_ADDR2}, v7, v11, s{S_LB}")

        def offs(ksl, e):
            if ksl < 4:
                row, m = 40 * ksl + 20 * (e >= 5), e % 5
            else:
                row, m = 40 * (e >> 1) + 20, 3 + (e & 1)
            if m < 4:
                return V_ADDR, (row + m) * 160
            return V_ADDR2, row * 160
        gather_tile(a, 5, offs)
        a(f"s_mul_i32 s{S_T3}, s{SB_P0}, {20*5*KB}")
        a(f"s_lshl_b32 s{S_T2}, s{S_IT}, 10")
        a(f"s_add_u32 s{S_T3}, s{S_T3}, s{S_T2}")
        a(f"s_add_u32 s{S_T3}, s{S_T3}, {WS.WO}")
        a(f"s_mul_i32 s{S_T4}, s{SB_P1}, {4*5*KB}")
        a(f"s_add_u32 s{S_T4}, s{S_T4}, s{S_T3}")
        add64(a, S_DST, S_WS, f"s{S_T4}")
        for ksl in range(4):
            a(f"global_store_dwordx4 v{V_L16}, {vr(V_FR + 4*ksl)}, {sp(S_DST)} sc1")
            if ksl < 3:
                add64(a, S_DST, S_DST, 5 * KB)
        a(f"s_add_u32 s{S_T4}, s{SB_P1}, 16")
        a(f"s_mul_i32 s{S_T4}, s{S_T4}, {5*KB}")
        a(f"s_add_u32 s{S_T4}, s{S_T4}, s{S_T3}")
        add64(a, S_DST, S_WS, f"s{S_T4}")
        a(f"global_store_dwordx4 v{V_L16}, {vr(V_FR + 16)}, {sp(S_DST)} sc1")
    tile_loop(a, 5, body)


def b_wd(a):
    def body():
        out_tile_col(a, SB_P0, S_IT)
        a("v_lshlrev_b32 v7, 1, v7")
        a(f"v_mul_u32_u24 v8, {8*160}, v{V_G}")
        a(f"v_add3_u32 v{V_ADDR}, v7, v8, s{S_LB}")
        gather_tile(a, 6, lambda ksl, e: (V_ADDR, (32*ksl + e) * 160))
        a(f"s_mul_i32 s{S_T3}, s{SB_P0}, {48*5*KB}")
        a(f"s_lshl_b32 s{S_T2}, s{S_IT}, 10")
        a(f"s_add_u32 s{S_T3}, s{S_T3}, s{S_T2}")
        a(f"s_mul_i32 s{S_T4}, s{SB_P1}, {6*5*KB}")
        a(f"s_add_u32 s{S_T3}, s{S_T3}, s{S_T4}")
        a(f"s_add_u32 s{S_T3}, s{S_T3}, {WS.WD}")
        add64(a, S_DST, S_WS, f"s{S_T3}")
        for ksl in range(6):
            a(f"global_store_dwordx4 v{V_L16}, {vr(V_FR + 4*ksl)}, {sp(S_DST)} sc1")
            if ksl < 5:
                add64(a, S_DST, S_DST, 5 * KB)
    tile_loop(a, 5, body)


SPIN_MAX = 4000000


def rank_request(a):
    other, join = a.newlabel("rk_o"), a.newlabel("rk_j")
    saved = list(a.vm)
    a(f"s_getreg_b32 s{S_T0}, hwreg(HW_REG_XCC_ID, 0, 4)")
    a(f"s_and_b32 s{S_T0}, s{S_T0}, 7")
    a(f"s_lshl_b32 s{S_T0}, s{S_T0}, 2")
    a(f"v_mov_b32 v5, s{S_T0}")
    a("v_mov_b32 v6, 1")
    a("s_mov_b64 exec, 1")
    a(f"s_cmp_lg_u32 s{S_WAVE}, 0")
    a.branch(f"s_cbranch_scc1 {other}", drained=False)
    a.touch(f"global_atomic_add v{V_RANK}, v5, v6, {sp(S_DBG)} sc0")
    a.branch(f"s_branch {join}", drained=False)
    a.vm = list(saved)
    a.label(other, drained=False)
    a.touch(f"global_load_dword v{V_DUM}, v5, {sp(S_DBG)} offset:192")
    a.label(join, drained=False)
    a("s_mov_b64 exec, -1")


def zero_check_load(a):
    a("v_mov_b32 v5, 128")
    a(f"global_load_dword v{V_ZERO}, v5, {sp(S_DBG)} sc1")


def finish_a(a):
    others, join = a.newlabel("fa_o"), a.newlabel("fa_j")
    a.wait_lg(0)
    a(f"s_cmp_lg_u32 s{S_WAVE}, 0")
    a.branch(f"s_cbranch_scc1 {others}", drained=False)
    a.force_wait("vmcnt(0)")
    a._put("s_barrier")
    skip, top, bail = a.newlabel("siga"), a.newlabel("sigz"), a.newlabel("sigzb")
    a(f"s_cmp_eq_u32 s{S_AF}, 0")
    a.branch(f"s_cbranch_scc1 {skip}")
    a(f"s_mov_b32 s{S_T0}, 0")
    a(f"v_cmp_ne_u32 vcc, 0, v{V_ZERO}")
    a.branch(f"s_cbranch_vccnz {bail}")
    a("v_mov_b32 v5, 128")
    a.label(top)
    a(f"global_load_dword v6, v5, {sp(S_DBG)} sc1")
    a("v_cmp_eq_u32 vcc, 0, v6")
    a(f"s_add_u32 s{S_T0}, s{S_T0}, 1")
    a(f"s_cmp_gt_u32 s{S_T0}, {SPIN_MAX}")
    a.branch(f"s_cbranch_scc1 {bail}")
    a.branch(f"s_cbranch_vccnz {top}")
    a.label(bail)
    a(f"v_mov_b32 v5, s{S_AF}")
    a("v_mov_b32 v6, 1")
    a("s_mov_b64 exec, 1")
    a(f"global_store_dword v5, v6, {sp(S_WS)} sc1")
    a("s_mov_b64 exec, -1")
    a.vm = []
    a.label(skip)
    place(a, finish_a.force_slow)
    a.branch(f"s_branch {join}")
    a.label(others)
    stage_block(a, SB_SRC, SB_STRIDE, SB_CPR, SB_MAGIC, SB_NCH, LDS_B, three=True)
    a.force_wait("vmcnt(10)")
    a._put("s_barrier")
    a.force_wait("vmcnt(0)")
    a.label(join)
    a.barrier()
    a(f"v_mov_b32 v5, {LDS_BC}")
    a("ds_read_b128 v[8:11], v5")
    a(f"v_readfirstlane_b32 s{S_RB}, v8")
    a(f"v_readfirstlane_b32 s{S_MEM}, v9")
    a(f"v_readfirstlane_b32 s{S_SLOW}, v10")


SPIN_MAX = 4000000
LDS_BC = 140000


def place(a, force_slow=False):
    top, bail, top2, bail2 = [a.newlabel(n) for n in ("w1poll", "w1bail", "w2poll", "w2bail")]
    a(f"v_lshlrev_b32 v5, 2, v{V_LANE}")
    a(f"s_mov_b32 s{S_T0}, 0")
    a("s_mov_b64 exec, 0xff")
    a.label(top)
    a(f"global_load_dword v6, v5, {sp(S_DBG)} sc1")
    a(f"s_mov_b32 s{S_T1}, 0")
    a(f"s_mov_b32 s{S_T2}, 0")
    for x in range(8):
        a(f"v_readlane_b32 s{S_T3}, v6, {x}")
        a(f"s_add_u32 s{S_T1}, s{S_T1}, s{S_T3}")
        a(f"s_xor_b32 s{S_T3}, s{S_T3}, 32")
        a(f"s_or_b32 s{S_T2}, s{S_T2}, s{S_T3}")
    a(f"s_add_u32 s{S_T0}, s{S_T0}, 1")
    a(f"s_cmp_gt_u32 s{S_T0}, {SPIN_MAX}")
    a.branch(f"s_cbranch_scc1 {bail}")
    a(f"s_cmp_lt_u32 s{S_T1}, 256")
    a.branch(f"s_cbranch_scc1 {top}")
    a.label(bail)
    a("s_mov_b64 exec, -1")
    a(f"s_cmp_lg_u32 s{S_T2}, 0")
    a(f"s_cselect_b32 s{S_SLOW}, 1, {1 if force_slow else 0}")
    a(f"s_getreg_b32 s{S_T0}, hwreg(HW_REG_XCC_ID, 0, 4)")
    a(f"s_and_b32 s{S_T0}, s{S_T0}, 7")
    a(f"v_readfirstlane_b32 s{S_T1}, v{V_RANK}")
    a(f"s_lshl_b32 s{S_T0}, s{S_T0}, 5")
    a(f"s_add_u32 s{S_T0}, s{S_T0}, s{S_T1}")
    a(f"s_cmp_eq_u32 s{S_SLOW}, 0")
    a(f"s_cselect_b32 s{S_T0}, s{S_T0}, s2")
    a(f"s_lshr_b32 s{S_RB}, s{S_T0}, 4")
    a(f"s_and_b32 s{S_MEM}, s{S_T0}, 15")
    a(f"s_lshl_b32 s{S_T0}, s{S_RB}, 7")
    a(f"s_lshr_b32 s{S_T1}, s{S_MEM}, 1")
    a(f"s_lshl_b32 s{S_T1}, s{S_T1}, 7")
    a(f"s_add_u32 s{S_T1}, s{S_T1}, {2048 - 32}")
    a(f"s_and_b32 s{S_T2}, s{S_MEM}, 1")
    a(f"v_lshlrev_b32 v5, 2, v{V_LANE}")
    a(f"v_add_u32 v6, s{S_T0}, v5")
    a(f"v_add_u32 v7, s{S_T1}, v5")
    a(f"v_cmp_gt_u32 vcc, 8, v{V_LANE}")
    a("v_cndmask_b32 v6, v7, v6, vcc")
    a(f"s_lshl_b32 s{S_T2}, s{S_T2}, 2")
    a(f"v_add_u32 v7, s{S_T2}, v7")
    a(f"v_cmp_eq_u32 vcc, 20, v{V_LANE}")
    a("v_cndmask_b32 v6, v6, v7, vcc")
    add64(a, S_DST, S_WS, WS.AFLAG)
    a(f"s_mov_b32 s{S_T0}, 0")
    a("s_mov_b64 exec, 0x1fffff")
    a.label(top2)
    a(f"global_load_dword v7, v6, {sp(S_DST)} sc1")
    a("v_cmp_eq_u32 vcc, 0, v7")
    a(f"s_add_u32 s{S_T0}, s{S_T0}, 1")
    a(f"s_cmp_gt_u32 s{S_T0}, {SPIN_MAX}")
    a.branch(f"s_cbranch_scc1 {bail2}")
    a.branch(f"s_cbranch_vccnz {top2}")
    a.label(bail2)
    a("s_mov_b64 exec, -1")
    a(f"v_mov_b32 v8, s{S_RB}")
    a(f"v_mov_b32 v9, s{S_MEM}")
    a(f"v_mov_b32 v10, s{S_SLOW}")
    a(f"v_mov_b32 v11, 0")
    a(f"v_mov_b32 v5, {LDS_BC}")
    a("ds_write_b128 v5, v[8:11]")
    a.drain()


CODE_KB = 56


def code_prefetch(a):
    a("s_getpc_b64 s[60:61]")
    a("s_and_b32 s60, s60, 0xffffff00")
    a(f"s_lshr_b32 s{S_T0}, s2, 3")
    a(f"s_lshl_b32 s{S_T0}, s{S_T0}, 2")
    a(f"s_add_u32 s{S_T0}, s{S_T0}, s{S_WAVE}")
    a(f"s_min_u32 s{S_T0}, s{S_T0}, {CODE_KB*2 - 1}")
    a(f"s_lshl_b32 s{S_T0}, s{S_T0}, 9")
    add64(a, 60, 60, f"s{S_T0}")
    a(f"v_lshlrev_b32 v5, 3, v{V_LANE}")
    a.touch(f"global_load_dwordx2 v[122:123], v5, s[60:61]")
    a.vm = []


def prep(a, force_slow=False, stamp=lambda i: None):
    l_x0, l_phi, l_misc, l_join = [a.newlabel(n) for n in ("a_x0", "a_phi", "a_misc", "a_join")]
    finish_a.force_slow = force_slow
    stamp(20)
    import os
    if "nocp" not in os.environ.get("EXP", ""):
        code_prefetch(a)
    a(f"s_mov_b32 s{S_LB}, {LDS_B}")
    decode_b(a)
    a("s_cmp_ge_u32 s2, 240")
    a.branch(f"s_cbranch_scc1 {l_misc}")
    a("s_cmp_ge_u32 s2, 224")
    a.branch(f"s_cbranch_scc1 {l_phi}")
    a("s_cmp_ge_u32 s2, 96")
    a.branch(f"s_cbranch_scc1 {l_x0}")
    for path, nxt in ((lambda: a_wqkv(a, stamp), l_x0), (lambda: a_x0(a), l_phi), (lambda: a_wphi(a), l_misc),
                      (lambda: a_misc(a), None)):
        path()
        a.wait_lg(0)
        if nxt is not None:
            a.branch(f"s_branch {l_join}", drained=False)
            a.vm = []
            a.label(nxt)
    a.label(l_join, drained=False)
    a.vm = []
    stamp(21)
    finish_a(a)
    stamp(22)
    l_bo, l_bd, l_bend = [a.newlabel(n) for n in ("b_o", "b_d", "b_end")]
    a.drain()
    a("s_cmp_ge_u32 s2, 224")
    a.branch(f"s_cbranch_scc1 {l_bend}")
    a(f"s_cmp_eq_u32 s{SB_TYPE}, 2")
    a.branch(f"s_cbranch_scc1 {l_bd}")
    a(f"s_cmp_eq_u32 s{SB_TYPE}, 1")
    a.branch(f"s_cbranch_scc1 {l_bo}")
    b_wgu(a)
    a.branch(f"s_branch {l_bend}", drained=False)
    a.vm = []
    a.label(l_bo)
    b_wo(a)
    a.branch(f"s_branch {l_bend}", drained=False)
    a.vm = []
    a.label(l_bd)
    b_wd(a)
    a.label(l_bend, drained=False)
    a.vm = []
    a.barrier()
    stamp(23)
```

```python
import sys, argparse
from asmgen import Asm
from layout import WS
import gen_prep as P

KNAME = "interleave_layers__linear_kernel_hedgehog__geglu_ffn__prompt_kernel"
HEADER = open("interleave_layers__linear_kernel_hedgehog__geglu_ffn__prompt.s.ref").read().split("; Override launch")[0]

def build(stop=None, force_slow=False, stamps=False):
    a = Asm()
    done = "L_done"
    P.prologue(a, done)
    import gen_main as M
    a('s_mov_b32 s28, 0')
    P.prep(a, force_slow, stamp=lambda i: M.stamp(a, stamps, i))
    M.stamp(a, stamps, 25)
    if stop != "prep":
        import gen_main as M
        M.main(a, stop=stop, stamps=stamps)
    a.drain()
    a.label(done)
    a.I("s_endpgm")
    body = a.text()
    s = HEADER
    s += "; @launch grid=(256,1,1) block=(256,1,1) lds=163840\n"
    s += '.amdgcn_target "amdgcn-amd-amdhsa--gfx950"\n.text\n'
    s += f".globl {KNAME}\n.p2align 8\n.type {KNAME},@function\n{KNAME}:\n"
    s += body
    s += f""".section .rodata,"a"
.p2align 6
.amdhsa_kernel {KNAME}
  .amdhsa_next_free_vgpr 512
  .amdhsa_next_free_sgpr 102
  .amdhsa_accum_offset 256
  .amdhsa_group_segment_fixed_size 0
  .amdhsa_kernarg_size 88
  .amdhsa_user_sgpr_count 2
  .amdhsa_user_sgpr_kernarg_segment_ptr 1
  .amdhsa_system_sgpr_workgroup_id_x 1
.end_amdhsa_kernel
"""
    return s, a

if __name__ == "__main__":
    ap = argparse.ArgumentParser()
    ap.add_argument("-o", default="k.s")
    ap.add_argument("--stop", default=None)
    ap.add_argument("--slow", action="store_true")
    ap.add_argument("--stamps", action="store_true")
    args = ap.parse_args()
    s, a = build(args.stop, args.slow, args.stamps)
    open(args.o, "w").write(s)
    print("instructions:", a.ninstr, a.stats)
```
